```python
import torch

def _softmax(x, axis=-1):
    return torch.softmax(x, dim=axis)
def _gelu(x):
    return torch.nn.functional.gelu(x, approximate="tanh")
def _silu(x):
    return torch.nn.functional.silu(x)
def _sigmoid(x):
    return torch.sigmoid(x)
def _layernorm(x, axis=-1, eps=1e-5):
    m = x.mean(dim=axis, keepdim=True)
    v = x.var(dim=axis, keepdim=True, unbiased=False)
    return (x - m) / torch.sqrt(v + eps)
def _scatter_add(tgt, idx, src, axis=0):
    return tgt.clone().index_add_(axis, idx, src)
def _segment_sum(src, seg, n):
    out = torch.zeros((n,) + src.shape[1:], dtype=src.dtype)
    return out.index_add_(0, seg, src)
def _pad(x, pw):
    flat = tuple(v for pair in reversed(pw) for v in pair)
    return torch.nn.functional.pad(x, flat)

kernel_name = 'interleave_layers__sliding_block_cached__glu_gated_glu__decode'

def setup_inputs():

    _w = (lambda a: (lambda t: t.to(torch.bfloat16) if t.is_floating_point() else t)(torch.as_tensor(a)))
    def _A_setup():
        B, Sq, D = 4, 1, 512
        Hq, Hkv, Sk, Dh = 32, 8, 8192, 128
        assert Hq % Hkv == 0, (Hq, Hkv)
        return {
            "x": _w((lambda *s: torch.randn(*s, dtype=torch.bfloat16) * 0.05)(B, Sq, D)),
            "k_cache": _w((lambda *s: torch.randn(*s, dtype=torch.bfloat16) * 1.6)(B, Hkv, Sk, Dh)),
            "v_cache": _w((lambda *s: torch.randn(*s, dtype=torch.bfloat16) * 1.6)(B, Hkv, Sk, Dh)),
            "wq": _w((lambda *s: torch.randn(*s, dtype=torch.bfloat16) * 1.6)(D, Hq * Dh) * (D ** -0.5)),
            "wo": _w((lambda *s: torch.randn(*s, dtype=torch.bfloat16) * 1.6)(Hq * Dh, D) * ((Hq * Dh) ** -0.5)),
        }
    _A_in = _A_setup()

    def _B_setup():
        B, S, D, F = 4, 1, 512, 1792
        return {
            "x": _w((lambda *s: torch.randn(*s, dtype=torch.bfloat16) * 0.05)(B, S, D)),
            "w_gate": _w((lambda *s: torch.randn(*s, dtype=torch.bfloat16) * 0.05)(D, F)),
            "w_up": _w((lambda *s: torch.randn(*s, dtype=torch.bfloat16) * 0.05)(D, F)),
            "w_down": _w((lambda *s: torch.randn(*s, dtype=torch.bfloat16) * 0.05)(F, D)),
        }
    _B_in = _B_setup()

    return {
        "A_x": _A_in["x"],
        "A_k_cache": _A_in["k_cache"],
        "A_v_cache": _A_in["v_cache"],
        "A_wq": _A_in["wq"],
        "A_wo": _A_in["wo"],
        "B_x": _B_in["x"],
        "B_w_gate": _B_in["w_gate"],
        "B_w_up": _B_in["w_up"],
        "B_w_down": _B_in["w_down"],
    }

def reference(A_x, A_k_cache, A_v_cache, A_wq, A_wo, B_x, B_w_gate, B_w_up, B_w_down):
    def _A_ref(x, k_cache, v_cache, wq, wo):
        B, Sq, D = x.shape
        Hq, Dh = 32, 128
        Hkv, Sk = k_cache.shape[1], k_cache.shape[2]
        W = min(4096, max(256, Sk // 4))
        rep = Hq // Hkv
        q = (lambda x, *d: x.permute(*d))((x @ wq).reshape(B, Sq, Hq, Dh), 0, 2, 1, 3)
        k = (lambda x, n, axis: torch.repeat_interleave(x, n, dim=axis))(k_cache[:, :, Sk - W:, :], rep, axis=1)
        v = (lambda x, n, axis: torch.repeat_interleave(x, n, dim=axis))(v_cache[:, :, Sk - W:, :], rep, axis=1)
        scores = torch.einsum("bhqd,bhkd->bhqk", q, k) * (Dh ** -0.5)
        p = _softmax(scores, axis=-1)
        o = torch.einsum("bhqk,bhkd->bhqd", p, v)
        return (lambda x, *d: x.permute(*d))(o, 0, 2, 1, 3).reshape(B, Sq, Hq * Dh) @ wo

    def _B_ref(x, w_gate, w_up, w_down):
        g = torch.einsum("bsd,df->bsf", x, w_gate)
        u = torch.einsum("bsd,df->bsf", x, w_up)
        h = _sigmoid(g) * u
        return torch.einsum("bsf,fd->bsd", h, w_down)

    x = A_x
    x = x + _A_ref(_layernorm(x, axis=-1), A_k_cache, A_v_cache, A_wq, A_wo)
    x = x + _B_ref(_layernorm(x, axis=-1), B_w_gate, B_w_up, B_w_down)
    x = x + _A_ref(_layernorm(x, axis=-1), A_k_cache, A_v_cache, A_wq, A_wo)
    x = x + _B_ref(_layernorm(x, axis=-1), B_w_gate, B_w_up, B_w_down)
    return x
```

```python
import re

TRANS = ("v_exp_f32","v_log_f32","v_rcp_f32","v_rsq_f32","v_sqrt_f32","v_sin_f32","v_cos_f32","v_rcp_iflag_f32")
_reg = re.compile(r"^(-|abs\()?\s*([vas])(\d+)\)?$")
_rng = re.compile(r"^(-)?([vas])\[(\d+):(\d+)\]$")

def regs_of(tok):
    tok = tok.strip()
    if tok == "vcc": return {("s","vcc")}
    if tok == "exec": return {("s","exec")}
    if tok == "m0": return {("s","m0")}
    m = _rng.match(tok)
    if m: return {(m.group(2), i) for i in range(int(m.group(3)), int(m.group(4))+1)}
    m = _reg.match(tok)
    if m: return {(m.group(2), int(m.group(3)))}
    return set()

class Ins:
    __slots__=("text","mn","ops","w","r","kind","srcA","srcB","srcC","dpp","store_data","nstates","sel")
    def __init__(self, text):
        self.text = text
        t = text.split(";")[0].strip()
        parts = t.split(None, 1)
        self.mn = parts[0]
        rest = parts[1] if len(parts) > 1 else ""
        ops=[]; cur=""; depth=0
        for ch in rest:
            if ch in "[(": depth+=1
            if ch in "])": depth-=1
            if ch=="," and depth==0: ops.append(cur.strip()); cur=""
            else: cur+=ch
        if cur.strip(): ops.append(cur.strip())
        clean=[]
        for o in ops:
            clean.append(o.split()[0] if o.split() else o)
        self.ops = clean
        self.dpp = ("_dpp" in self.mn) or (" row_" in t) or ("quad_perm" in t)
        self.w=set(); self.r=set(); self.srcA=self.srcB=self.srcC=set(); self.store_data=set(); self.sel=set()
        self.nstates = 1
        mn=self.mn
        R=lambda i: regs_of(clean[i]) if i < len(clean) else set()
        allr=lambda a: set().union(*[regs_of(x) for x in clean[a:]]) if len(clean)>a else set()
        if mn=="s_nop":
            self.kind="nop"; self.nstates=int(clean[0],0)+1
        elif mn.startswith("v_mfma"):
            self.kind="mfma"; self.w=R(0); self.srcA=R(1); self.srcB=R(2); self.srcC=R(3); self.r=self.srcA|self.srcB|self.srcC
        elif mn.startswith("v_cmp"):
            self.kind="valu"; self.w=R(0); self.r=allr(1)
        elif mn.startswith("v_readlane") or mn.startswith("v_readfirstlane"):
            self.kind="valu"; self.w=R(0); self.r=allr(1)
            if mn.startswith("v_readlane"): self.sel=R(2)
        elif mn.startswith("v_writelane"):
            self.kind="valu"; self.w=R(0); self.r=allr(0); self.sel=R(2)
        elif mn.startswith("v_permlane"):
            self.kind="valu"; self.w=R(0)|R(1); self.r=R(0)|R(1)
        elif mn.startswith("v_"):
            self.kind="valu"; self.w=R(0); self.r=allr(1)
            base=mn.replace("_e32","").replace("_e64","").replace("_dpp","")
            if base in ("v_add_co_u32","v_sub_co_u32","v_addc_co_u32","v_subb_co_u32"):
                self.w=R(0)|R(1); self.r=allr(2)
            if base.startswith("v_fmac") or base.startswith("v_dot2c") or base.startswith("v_mac"): self.r|=R(0)
            if base=="v_cndmask_b32" and len(clean)==3: self.r|={("s","vcc")}
            if self.dpp: self.r|=R(0)
        elif mn.startswith("ds_read") or mn.startswith("ds_bpermute") or mn.startswith("ds_swizzle"):
            self.kind="ds"; self.w=R(0); self.r=allr(1)
        elif mn.startswith("ds_"):
            self.kind="ds"; self.r=allr(0)
        elif mn.startswith("global_load_lds") :
            self.kind="vmem"; self.r=allr(0)|{("s","m0")}
        elif mn.startswith("buffer_load") and " lds" in t:
            self.kind="vmem"; self.r=allr(0)|{("s","m0")}
        elif mn.startswith("global_load") or mn.startswith("buffer_load"):
            self.kind="vmem"; self.w=R(0); self.r=allr(1)
        elif mn.startswith("global_store"):
            self.kind="vmem"; self.r=allr(0)
            if "x4" in mn or "x3" in mn: self.store_data=R(1)
        elif mn.startswith("buffer_store"):
            self.kind="vmem"; self.r=allr(0)
            if "x4" in mn or "x3" in mn: self.store_data=R(0)
        elif mn.startswith("global_atomic") or mn.startswith("buffer_atomic"):
            self.kind="vmem"; self.r=allr(0)
            if " sc0" in t: self.w=R(0)
        elif mn.startswith("s_load") or mn.startswith("s_memtime") or mn.startswith("s_memrealtime"):
            self.kind="smem"; self.w=R(0); self.r=allr(1)
        elif mn.startswith("s_cmp") or mn.startswith("s_bitcmp"):
            self.kind="salu"; self.r=allr(0)
        elif mn.startswith("s_cbranch") or mn in ("s_branch","s_barrier","s_waitcnt","s_sleep","s_endpgm","s_setprio"):
            self.kind="ctl"
        elif mn.startswith("s_"):
            self.kind="salu"; self.w=R(0); self.r=allr(1)
            if "saveexec" in mn: self.w|={("s","exec")}; self.r|={("s","exec")}
        else:
            raise ValueError("unknown instr: "+text)

def vonly(s): return {x for x in s if x[0] in "va"}
def sonly(s): return {x for x in s if x[0]=="s"}

def need(p, c):
    n=0
    pv=vonly(p.w); ps=sonly(p.w)
    if p.kind=="valu":
        if c.kind=="mfma" and pv & c.r: n=max(n,2)
        if c.kind=="valu":
            if c.dpp and pv & c.r: n=max(n,2)
            if c.mn.startswith("v_permlane") and pv & c.r: n=max(n,2)
            if (c.mn.startswith("v_readlane") or c.mn.startswith("v_readfirstlane")) and pv & c.r: n=max(n,1)
            if ps & c.sel: n=max(n,4)
            if ps & (c.r - c.sel): n=max(n,2)
            base=p.mn.replace("_e32","").replace("_e64","").replace("_dpp","")
            if base in TRANS and pv & c.r: n=max(n,1)
        if c.kind in ("vmem",) and ps & c.r: n=max(n,5)
        if c.kind=="ds" and ps & c.r: n=max(n,5)
    if p.kind=="mfma":
        if c.kind=="mfma":
            if pv & (c.srcA|c.srcB): n=max(n,8)
            if pv & c.srcC:
                n=max(n, 0 if (c.srcC==p.w) else 6)
            elif pv & c.w: n=max(n,6)
        elif c.kind in ("valu","ds","vmem"):
            if pv & (c.r|c.w): n=max(n,8)
        if c.kind=="valu" and vonly(p.srcC) & c.w: n=max(n,3)
    if p.kind=="salu" and ("s","m0") in p.w:
        if c.kind=="vmem" and ("s","m0") in c.r: n=max(n,1)
        if c.kind=="valu" and ("s","m0") in c.r: n=max(n,1)
    if p.kind=="vmem" and p.store_data and c.kind=="valu" and (p.store_data & c.w): n=max(n,2)
    if p.kind=="vmem" and p.store_data and c.kind in ("ds","vmem") and (p.store_data & c.w): n=max(n,1)
    return n

class Asm:
    def __init__(self, auto=True):
        self.lines=[]; self.auto=auto
        self.windows=[[]]
        self.pending={}
        self._l=0; self.nops=0; self.count=0
    def lbl(self, base="L"):
        self._l+=1; return f"{base}_{self._l}"
    def comment(self, s): self.lines.append("; "+s)
    def label(self, name):
        self.lines.append(name+":")
        if name in self.pending:
            self.windows += self.pending.pop(name)
    def _advance(self, ins):
        new=[]
        for w in self.windows:
            w=[(p,d+ins.nstates) for (p,d) in w if d+ins.nstates<24]
            new.append(w)
        if ins.kind in ("valu","mfma","salu","vmem"):
            for w in new: w.append((ins,0))
        seen=[]; out=[]
        for w in new:
            key=tuple((id(p),d) for p,d in w)
            if key not in seen: seen.append(key); out.append(w)
        self.windows=out
    def raw(self, s):
        self.lines.append(s)
    def __call__(self, s):
        for l in s.split("\n"):
            l=l.strip()
            if not l: continue
            if l.startswith(";"): self.lines.append(l); continue
            if l.endswith(":"): self.label(l[:-1]); continue
            if l.startswith("."): self.lines.append(l); continue
            ins=Ins(l)
            if self.auto and ins.kind not in ("nop","ctl"):
                k=0
                for w in self.windows:
                    for (p,d) in w:
                        k=max(k, need(p,ins)-d)
                if k>0:
                    self.nops+=k
                    while k>0:
                        n=min(k,16); nop=Ins(f"s_nop {n-1}"); self.lines.append(nop.text); self._advance(nop); k-=n
            self.lines.append(l); self.count+=1
            self._advance(ins)
            if ins.mn.startswith("s_cbranch") or ins.mn=="s_branch":
                tgt=l.split()[-1]
                self.pending.setdefault(tgt,[]).extend([list(w) for w in self.windows])
                if ins.mn=="s_branch": self.windows=[[]]
            if ins.mn=="s_endpgm": self.windows=[[]]
    def text(self): return "\n".join(self.lines)+"\n"

def kernel_file(name, body, header_lines, vgpr=512, sgpr=102, accum=256):
    out=list(header_lines)
    out+=['.amdgcn_target "amdgcn-amd-amdhsa--gfx950"', ".text", f".globl {name}", ".p2align 8", f".type {name},@function", f"{name}:", body.rstrip("\n"),
          '.section .rodata,"a"', ".p2align 6", f".amdhsa_kernel {name}", f"  .amdhsa_next_free_vgpr {vgpr}", f"  .amdhsa_next_free_sgpr {sgpr}",
          f"  .amdhsa_accum_offset {accum}", "  .amdhsa_group_segment_fixed_size 0", "  .amdhsa_kernarg_size 96", "  .amdhsa_user_sgpr_count 2",
          "  .amdhsa_user_sgpr_kernarg_segment_ptr 1", "  .amdhsa_system_sgpr_workgroup_id_x 1", ".end_amdhsa_kernel"]
    return "\n".join(out)+"\n"
```

```python
import sys, os
sys.path.insert(0, os.path.dirname(os.path.abspath(__file__)))
from asm2 import Asm, kernel_file

NAME = "interleave_layers__sliding_block_cached__glu_gated_glu__decode_kernel"

class Cfg:
    stamps = False
    spin_limit = 40000
    d_X = 6; d_H = 6; d_Y = 6
    d_O = 0; d_Q = 0; d_Z = 0
    kv_nt = True
    w_nt = False
    force_slow = False
    code_prefetch = True

IT_STRIDE = 0x80000
R_Q  = 0
R_O  = 32*1024
R_OS = 288*1024
R_X  = 296*1024
R_H  = 328*1024
R_YZ = 344*1024
STAMP_OFF = 2*1024*1024
BUF_A = 0
BUF_B = 65536
E = 131072
PQ, PQC, PO, PG, PGC, PD, QB = E, E+1024, E+2048, E+3072, E+4096, E+5120, E+6144
STQ, STG, FL, SB = E+7168, E+7232, E+7296, E+7360
OB = E+8192
LDS_SIZE = E+16384

sG, sB, sS, sW, sLOC = 3, 4, 5, 6, 7
pX, pK, pV, pWQ, pWO, pGATE, pUP, pDOWN, pOUT, pDBG, pWS = 8, 10, 12, 14, 16, 20, 22, 24, 26, 28, 30
SRD = 32
sOFF, sCNT, sT0, sT1 = 36, 37, 38, 39
mA2, mD, mQ = 40, 42, 44
pIT, pR = 46, 48
mEVEN, mODD, mEV32 = 50, 52, 54
sSPIN, sGRP, sFS, sT2 = 56, 57, 58, 59
m0_32, mLOW4 = 60, 62
sC = 64
sT3, sT4 = 66, 67
sSTAMP = 68
pST = 70
def sp(r): return f"s[{r}:{r+1}]"

vL = 0
vXY, vO, vOS, vH, vQ = 1, 2, 3, 4, 5
vPQ, vPO, vPOS, vPX, vPH, vPY, vPZ = 6, 7, 8, 9, 10, 11, 12
vPW, vPR = 13, 14
vCQ, vCG, vRES = 15, 16, 17
vOD, vOC = 18, 19
vONE = 20
vSTW, vSBW, vSBR, vDW, vDR = 24, 25, 26, 27, 28
vES = 29
vT = 30
A0, A1 = 32, 36
vOSD = 40
T = 42
ACC = 64
GR, SX = 96, 100
ACC2 = 104
QF, SA, PP, OA, LA = 64, 80, 96, 104, 136
DT, GT = 160, 192
aK, aV, aWQ, aWO = 0, 64, 128, 192
def v(r, n=1): return f"v{r}" if n == 1 else f"v[{r}:{r+n-1}]"
def a_(r, n=1): return f"a{r}" if n == 1 else f"a[{r}:{r+n-1}]"
def Wq(ts, ct): return a_(aWQ + (ct*4+ts)*4, 4)
def Wo(ts, ct): return a_(aWO + (ct*4+ts)*4, 4)
def Wg(ts, ct): return v(GT + (ct*4+ts)*4, 4)
def Wd(ts, ct): return v(DT + (ct*2+ts)*4, 4)
DPP = "row_mask:0xf bank_mask:0xf"
MF = "v_mfma_f32_16x16x32_bf16"

class Gen:
    def __init__(self, cfg):
        self.c = cfg
        self.a = Asm()
        self.nstamp = 0
        self.stamp_names = []

    def stamp(self, name):
        if not self.c.stamps: return
        a = self.a
        i = self.nstamp; self.nstamp += 1; self.stamp_names.append(name)
        l = a.lbl("Lst")
        a(f"s_cmp_lg_u32 s{sW}, 3\ns_cbranch_scc1 {l}")
        a(f"s_memrealtime {sp(sSTAMP)}\ns_waitcnt lgkmcnt(0)")
        a(f"s_mov_b64 {sp(72)}, exec\ns_mov_b64 exec, 1")
        a(f"v_mov_b32 v62, s{sSTAMP}\nv_mov_b32 v63, {i*4}")
        a(f"global_store_dword v63, v62, {sp(pST)}")
        a(f"s_mov_b64 exec, {sp(72)}")
        a(f"{l}:")

    def region(self, off):
        if off >= 0:
            self.a(f"s_add_u32 s{pR}, s{pIT}, {off}\ns_addc_u32 s{pR+1}, s{pIT+1}, 0")
        else:
            self.a(f"s_sub_u32 s{pR}, s{pIT}, {-off}\ns_subb_u32 s{pR+1}, s{pIT+1}, 0")

    def srd(self, ptr, nbytes):
        self.a(f"s_mov_b32 s{SRD}, s{ptr}\ns_and_b32 s{SRD+1}, s{ptr+1}, 0xffff\ns_mov_b32 s{SRD+2}, {nbytes}\ns_mov_b32 s{SRD+3}, 0x20000")

    def dma_loop(self, n_iter, vregs, soff_step, nt):
        a = self.a
        fl = "nt " if nt else ""
        l = a.lbl("Ldma")
        a(f"s_mov_b32 s{sCNT}, {n_iter}")
        a(f"{l}:")
        for r in vregs:
            a(f"buffer_load_dwordx4 v{r}, s[{SRD}:{SRD+3}], s{sOFF} offen {fl}lds")
            a(f"s_add_u32 m0, m0, 1024\ns_add_u32 s{sOFF}, s{sOFF}, {soff_step}")
        a(f"s_sub_u32 s{sCNT}, s{sCNT}, 1\ns_cmp_lg_u32 s{sCNT}, 0\ns_cbranch_scc1 {l}")

    def poll(self, loads, regs, mask=None, delay=0):
        a = self.a
        if delay: a(f"s_sleep {delay}")
        if mask is not None: a(f"s_mov_b64 exec, {sp(mask)}")
        l = a.lbl("Lpoll"); d = a.lbl("Lgot")
        a(f"s_mov_b32 s{sSPIN}, 0")
        a(f"{l}:")
        for s in loads: a(s)
        a(f"s_add_u32 s{sSPIN}, s{sSPIN}, 1\ns_cmp_ge_u32 s{sSPIN}, {self.c.spin_limit}\ns_cbranch_scc1 {d}")
        a("s_waitcnt vmcnt(0)")
        cur, rest = regs[0], list(regs[1:])
        while rest:
            if len(rest) >= 2:
                a(f"v_max3_u32 v{T}, v{cur}, v{rest[0]}, v{rest[1]}"); rest = rest[2:]
            else:
                a(f"v_max_u32 v{T}, v{cur}, v{rest[0]}"); rest = rest[1:]
            cur = T
        a(f"v_cmp_eq_u32 vcc, -1, v{cur}")
        a(f"s_cbranch_vccnz {l}")
        a(f"{d}:")
        a("s_waitcnt vmcnt(0)")
        if mask is not None: a("s_mov_b64 exec, -1")

    def store_local(self, instr):
        a = self.a
        if self.c.force_slow:
            a(instr + " sc1"); return
        l1 = a.lbl("Lsl"); l2 = a.lbl("Lse")
        a(f"s_cmp_eq_u32 s{sLOC}, 0\ns_cbranch_scc1 {l1}")
        a(instr)
        a(f"s_branch {l2}")
        a(f"{l1}:")
        a(instr + " sc1")
        a(f"{l2}:")

    def only_wave(self, w):
        l = self.a.lbl("Lw")
        self.a(f"s_cmp_lg_u32 s{sW}, {w}\ns_cbranch_scc1 {l}")
        return l
    def only_loader(self):
        l = self.a.lbl("Lld")
        self.a(f"s_cmp_ge_u32 s{sW}, 2\ns_cbranch_scc1 {l}")
        return l

    def barrier(self):
        self.a("s_waitcnt lgkmcnt(0)\ns_barrier")

    def w_read_addrs(self, buf, wave_shift):
        a = self.a
        a(f"v_lshrrev_b32 v{T+4}, 4, v{vL}")
        a(f"v_bfe_u32 v{T+5}, v{vL}, 2, 2")
        a(f"v_lshl_add_u32 v{T+6}, v{T+4}, 3, v{T+5}")
        a(f"v_lshlrev_b32 v{T+6}, 7, v{T+6}")
        a(f"v_lshrrev_b32 v{T+7}, 1, v{T+5}")
        a(f"v_and_b32 v{T+4}, 1, v{T+4}")
        a(f"v_lshl_or_b32 v{T+7}, v{T+4}, 1, v{T+7}")
        a(f"v_lshlrev_b32 v{T+7}, 1, v{T+7}")
        a(f"v_bfe_u32 v{T+4}, v{vL}, 1, 1")
        a(f"v_xor_b32 v{T+7}, v{T+7}, v{T+4}")
        a(f"v_lshl_add_u32 v{T+6}, v{T+7}, 4, v{T+6}")
        a(f"v_and_b32 v{T+4}, 1, v{vL}")
        a(f"v_lshl_add_u32 v{T+6}, v{T+4}, 3, v{T+6}")
        a(f"s_lshl_b32 s{sT0}, s{sW}, {wave_shift}\ns_add_u32 s{sT0}, s{sT0}, {buf}")
        a(f"v_add_u32 v{T+6}, s{sT0}, v{T+6}")
        for ct in range(4):
            a(f"v_xor_b32 v{T+ct}, {32*ct}, v{T+6}")
    def w_reads(self, dest, nts, cts):
        a = self.a
        for ct in cts:
            for ts in range(nts):
                d = dest(ts, ct)
                pre = d[0]; base = int(d[2:d.index(":")])
                for h in range(2):
                    a(f"ds_read_b64_tr_b16 {pre}[{base+2*h}:{base+2*h+1}], v{T+ct} offset:{ts*4096+h*512}")

    def mf(self, d, A, B, c):
        self.a(f"{MF} {v(d,4)}, {A}, {B}, {c}")

    def gemv_mfmas(self, W, acc, A0r, A1r, cts=range(4)):
        out = []
        for ct in cts:
            d0 = acc + (ct*2)*4; d1 = d0 + 4
            out.append([f"{MF} {v(d0,4)}, {v(A0r,4)}, {W(0,ct)}, 0",
                        f"{MF} {v(d1,4)}, {v(A0r,4)}, {W(1,ct)}, 0",
                        f"{MF} {v(d0,4)}, {v(A1r,4)}, {W(2,ct)}, {v(d0,4)}",
                        f"{MF} {v(d1,4)}, {v(A1r,4)}, {W(3,ct)}, {v(d1,4)}"])
        return out
    def val_ops(self, acc, ct, dst, weighted=None):
        d0 = acc + (ct*2)*4; d1 = d0 + 4
        if weighted is None:
            return [f"v_add_f32 v{dst}, v{d0}, v{d0+2}", f"v_add_f32 v{d1+1}, v{d1+1}, v{d1+3}", f"v_add_f32 v{dst}, v{dst}, v{d1+1}"]
        wA, wB = weighted
        return [f"v_add_f32 v{d0}, v{d0}, v{d1+1}", f"v_add_f32 v{d0+2}, v{d0+2}, v{d1+3}",
                f"v_mul_f32 v{dst}, v{wA}, v{d0}", f"v_fmac_f32 v{dst}, v{wB}, v{d0+2}"]
    def row_reduce(self, val):
        a = self.a
        a(f"v_permlane32_swap_b32 v{val}, v{val+2}")
        a(f"v_permlane32_swap_b32 v{val+1}, v{val+3}")
        a(f"v_add_f32 v{val}, v{val}, v{val+2}")
        a(f"v_add_f32 v{val+1}, v{val+1}, v{val+3}")
        a(f"v_permlane16_swap_b32 v{val}, v{val+1}")
        a(f"v_add_f32 v{val}, v{val}, v{val+1}")
    def stats_mfmas(self):
        return [f"{MF} {v(GR,4)}, {v(A0,4)}, {v(A0,4)}, 0", f"{MF} {v(SX,4)}, {v(A0,4)}, {v(vONE,4)}, 0",
                f"{MF} {v(GR,4)}, {v(A1,4)}, {v(A1,4)}, {v(GR,4)}", f"{MF} {v(SX,4)}, {v(A1,4)}, {v(vONE,4)}, {v(SX,4)}"]
    def stats_ops(self):
        x2, x1, t = T+8, T+9, T+10
        return [f"v_add_f32 v{GR}, v{GR}, v{GR+2}", f"v_add_f32 v{GR+1}, v{GR+1}, v{GR+3}",
                f"v_add_f32 v{SX}, v{SX}, v{SX+1}", f"v_add_f32 v{SX+2}, v{SX+2}, v{SX+3}",
                f"v_cndmask_b32 v{x2}, v{GR}, v{GR+1}, {sp(mODD)}",
                f"v_add_f32 v{x1}, v{SX}, v{SX+2}",
                f"v_add_f32_dpp v{x2}, v{x2}, v{x2} row_ror:8 {DPP}",
                f"v_add_f32_dpp v{x2}, v{x2}, v{x2} row_ror:4 {DPP}",
                f"v_add_f32_dpp v{x2}, v{x2}, v{x2} row_ror:2 {DPP}",
                f"v_add_f32_dpp v{x2}, v{x2}, v{x2} row_ror:1 {DPP}",
                f"v_permlane32_swap_b32 v{x2}, v{x1}",
                f"v_add_f32 v{x2}, v{x2}, v{x1}",
                f"v_mov_b32 v{t}, v{x2}",
                f"v_permlane16_swap_b32 v{x2}, v{t}",
                f"v_add_f32 v{x2}, v{x2}, v{t}"]

    def gemv(self, W, parea, stats=None, weighted=None, pre_ops=(), A0r=A0, A1r=A1, acc=ACC):
        a = self.a
        val = T+12
        m = self.gemv_mfmas(W, acc, A0r, A1r)
        fill = list(pre_ops)
        if stats is not None:
            for s in self.stats_mfmas(): a(s)
        for s in m[0]: a(s)
        for s in m[1]: a(s)
        if stats is not None: fill += self.stats_ops()
        rest = m[2] + m[3]
        per = (len(fill) + len(rest) - 1) // len(rest) if fill else 0
        for s in rest:
            a(s)
            for _ in range(per):
                if fill: a(fill.pop(0))
        for s in fill: a(s)
        for ct in range(4):
            for s in self.val_ops(acc, ct, val+ct, weighted): a(s)
        self.row_reduce(val)
        a(f"ds_write_b32 v{vPW}, v{val} offset:{parea-E}")
        if stats is not None:
            a(f"s_mov_b64 exec, {sp(m0_32)}")
            a(f"ds_write_b32 v{vSTW}, v{T+8} offset:{stats-STQ}")
            a("s_mov_b64 exec, -1")

    def final_sum(self, parea, dst):
        a = self.a
        a(f"ds_read2st64_b32 {v(T,2)}, v{vPR} offset0:{(parea-E)//256} offset1:{(parea-E)//256+1}")
        a(f"ds_read2st64_b32 {v(T+2,2)}, v{vPR} offset0:{(parea-E)//256+2} offset1:{(parea-E)//256+3}")
    def final_sum2(self, dst):
        a = self.a
        a(f"v_add_f32 v{T}, v{T}, v{T+1}\nv_add_f32 v{T+2}, v{T+2}, v{T+3}\nv_add_f32 v{dst}, v{T}, v{T+2}")
    def ln_fix(self, st, z, cs):
        a = self.a
        a(f"ds_read_b128 {v(T+4,4)}, v{vES} offset:{st-E}")
        a(f"ds_read_b128 {v(T+8,4)}, v{vES} offset:{st-E+16}")
        a("s_waitcnt lgkmcnt(0)")
        self.final_sum2(z)
        a(f"v_add_f32 v{T+4}, v{T+4}, v{T+6}\nv_add_f32 v{T+5}, v{T+5}, v{T+7}")
        a(f"v_add_f32 v{T+8}, v{T+8}, v{T+10}\nv_add_f32 v{T+9}, v{T+9}, v{T+11}")
        a(f"v_add_f32 v{T+4}, v{T+4}, v{T+8}\nv_add_f32 v{T+5}, v{T+5}, v{T+9}")
        a(f"v_mul_f32 v{T+5}, 0x3b000000, v{T+5}")
        a(f"v_mul_f32 v{T+4}, 0x3b000000, v{T+4}")
        a(f"v_fma_f32 v{T+4}, -v{T+5}, v{T+5}, v{T+4}")
        a(f"v_max_f32 v{T+4}, 0, v{T+4}")
        a(f"v_add_f32 v{T+4}, 0x3727c5ac, v{T+4}")
        a(f"v_rsq_f32 v{T+4}, v{T+4}")
        a(f"v_fma_f32 v{z}, -v{T+5}, v{cs}, v{z}")
        a(f"v_mul_f32 v{z}, v{z}, v{T+4}")
    def pack_pairs(self, z, dst):
        a = self.a
        a(f"v_mov_b32_dpp v{T+1}, v{z} quad_perm:[1,1,3,3] {DPP}")
        a(f"v_cvt_pk_bf16_f32 v{dst}, v{z}, v{T+1}")
    def sum8_resid(self, off_region, voff_expr_reg):
        a = self.a
        self.region(off_region)
        for p in range(8):
            pass
        a(f"v_add_u32 v{T+8}, 4096, v{voff_expr_reg}")
        for p in range(8):
            base = voff_expr_reg if p < 4 else T+8
            a(f"global_load_ushort v{T+p}, v{base}, {sp(pR)} offset:{(p%4)*1024} sc1")
        a("s_waitcnt vmcnt(0)")
        for p in range(8): a(f"v_lshlrev_b32 v{T+p}, 16, v{T+p}")
        a(f"v_add_f32 v{T}, v{T}, v{T+1}\nv_add_f32 v{T+2}, v{T+2}, v{T+3}\nv_add_f32 v{T+4}, v{T+4}, v{T+5}\nv_add_f32 v{T+6}, v{T+6}, v{T+7}")
        a(f"v_add_f32 v{T}, v{T}, v{T+2}\nv_add_f32 v{T+4}, v{T+4}, v{T+6}\nv_add_f32 v{vRES}, v{T}, v{T+4}")

    def prologue(self):
        a = self.a; c = self.c
        a(f"s_cmp_ge_u32 s2, 256\ns_cbranch_scc1 L_end")
        a(f"s_load_dwordx16 s[8:23], s[0:1], 0\ns_load_dwordx8 s[24:31], s[0:1], 64")
        a(f"v_lshrrev_b32 v{vT}, 6, v0\nv_and_b32 v{vL}, 63, v0")
        a(f"s_and_b32 s{sG}, s2, 7\ns_lshr_b32 s{sT0}, s2, 3\ns_lshr_b32 s{sB}, s{sT0}, 3\ns_and_b32 s{sS}, s{sT0}, 7")
        a(f"v_readfirstlane_b32 s{sW}, v{vT}\ns_nop 3")
        a(f"s_lshl_b32 s{sGRP}, s{sG}, 2\ns_add_u32 s{sGRP}, s{sGRP}, s{sB}")
        a(f"v_lshrrev_b32 v{T}, 3, v{vL}")
        a(f"v_and_b32 v{T+1}, 7, v{vL}")
        a(f"v_bfe_u32 v{T+2}, v{vL}, 4, 1")
        a(f"v_lshlrev_b32 v{T+2}, 1, v{T+2}")
        a(f"v_xor_b32 v{T+1}, v{T+1}, v{T+2}")
        a(f"v_lshlrev_b32 v{T+1}, 4, v{T+1}")
        a(f"v_lshl_add_u32 v{T+3}, v{T}, 13, v{T+1}")
        a(f"v_xor_b32 v{T+4}, 64, v{T+3}")
        a(f"v_lshrrev_b32 v{T+5}, 4, v{vL}\nv_and_b32 v{T+6}, 15, v{vL}")
        a(f"v_xor_b32 v{T+7}, v{T+6}, v{T+5}")
        a(f"v_lshlrev_b32 v{T+7}, 4, v{T+7}")
        a(f"v_lshl_add_u32 v{T+8}, v{T+5}, 8, v{T+7}")
        a(f"v_xor_b32 v{T+9}, 64, v{T+8}\nv_xor_b32 v{T+10}, 128, v{T+8}\nv_xor_b32 v{T+11}, 192, v{T+8}")
        for r in range(8): a(f"v_mov_b32 v{A0+r}, 0")
        a(f"s_mov_b32 s{mA2}, 0x00030003\ns_mov_b32 s{mA2+1}, 0x00030003")
        a(f"v_and_b32 v{T+12}, 1, v{vL}\nv_lshlrev_b32 v{T+12}, 2, v{T+12}\nv_add_u32 v{T+12}, v{T+12}, v{T+5}\nv_lshlrev_b32 v{T+12}, 4, v{T+12}")
        a(f"s_lshl_b32 s{sT0}, s{sB}, 10\ns_lshl_b32 s{sT1}, s{sW}, 8\ns_add_u32 s{sT0}, s{sT0}, s{sT1}")
        a(f"v_add_u32 v{T+12}, s{sT0}, v{T+12}")
        a("s_waitcnt lgkmcnt(0)")
        a(f"s_mov_b64 exec, {sp(mA2)}")
        a(f"global_load_dwordx4 {v(A0,4)}, v{T+12}, {sp(pX)}")
        a(f"global_load_dwordx4 {v(A1,4)}, v{T+12}, {sp(pX)} offset:128")
        a("s_mov_b64 exec, -1")
        l = self.only_loader()
        self.srd(pWQ, 4194304)
        a(f"s_lshl_b32 s{sOFF}, s{sG}, 10\ns_lshl_b32 s{sT0}, s{sS}, 7\ns_add_u32 s{sOFF}, s{sOFF}, s{sT0}")
        a(f"s_lshl_b32 s{sT0}, s{sW}, 21\ns_add_u32 s{sOFF}, s{sOFF}, s{sT0}")
        a(f"s_lshl_b32 s{sT0}, s{sW}, 15\ns_add_u32 m0, s{sT0}, {BUF_A}")
        self.dma_loop(16, [T+3, T+4], 65536, c.w_nt)
        self.srd(pK, 67108864)
        self.kv_base()
        a(f"s_lshl_b32 s{sT0}, s{sW}, 15\ns_add_u32 s{sOFF}, s{sT2}, s{sT0}\ns_add_u32 m0, s{sT0}, {BUF_B}")
        self.dma_loop(8, [T+8, T+9, T+10, T+11], 1024, c.kv_nt)
        a(f"{l}:")
        l = self.only_wave(3)
        a(f"s_lshl_b32 s{sT0}, s2, 12\nv_lshlrev_b32 v{T+13}, 4, v{vL}\nv_add_u32 v{T+13}, s{sT0}, v{T+13}")
        for r in range(4): a(f"v_mov_b32 v{T+14+r}, -1")
        for i in range(4): a(f"global_store_dwordx4 v{T+13}, {v(T+14,4)}, {sp(pWS)} offset:{i*1024} sc1")
        a("s_getreg_b32 s65, hwreg(HW_REG_XCC_ID, 0, 4)")
        a(f"s_mul_i32 s66, s65, s65\ns_lshl_b32 s66, s66, 17\ns_lshl_b32 s{sT0}, s65, 8\ns_or_b32 s66, s66, s{sT0}\ns_or_b32 s66, s66, 1")
        a(f"s_lshl_b32 s{sT0}, s{sG}, 5\nv_mov_b32 v{T+18}, s{sT0}\nv_mov_b32 v{T+19}, s66")
        a("s_waitcnt vmcnt(0)\ns_mov_b64 exec, 1")
        a(f"global_atomic_add v{T+18}, v{T+19}, {sp(pDBG)} sc1")
        a("s_mov_b64 exec, -1")
        a(f"{l}:")
        if c.code_prefetch:
            l = self.only_wave(2)
            a(f"s_getpc_b64 {sp(pR)}")
            a("L_pc:")
            a(f"s_sub_u32 s{pR}, s{pR}, L_pc-{NAME}\ns_subb_u32 s{pR+1}, s{pR+1}, 0")
            a(f"s_lshr_b32 s{sT0}, s2, 3\ns_lshl_b32 s{sT0}, s{sT0}, 11\nv_lshlrev_b32 v{T+13}, 4, v{vL}\nv_add_u32 v{T+13}, s{sT0}, v{T+13}")
            a(f"s_mov_b32 s{sT1}, L_text_end-{NAME}-1024-16")
            a(f"v_min_u32 v{T+13}, s{sT1}, v{T+13}")
            a(f"global_load_dwordx4 {v(T+14,4)}, v{T+13}, {sp(pR)}\nglobal_load_dwordx4 {v(T+18,4)}, v{T+13}, {sp(pR)} offset:1024")
            a(f"{l}:")
        self.setup()

    def kv_base(self):
        a = self.a
        a(f"s_lshl_b32 s{sT2}, s{sB}, 24\ns_lshl_b32 s{sT0}, s{sG}, 21\ns_add_u32 s{sT2}, s{sT2}, s{sT0}")
        a(f"s_lshl_b32 s{sT0}, s{sS}, 16\ns_add_u32 s{sT2}, s{sT2}, s{sT0}\ns_add_u32 s{sT2}, s{sT2}, {6144*256}")

    def setup(self):
        a = self.a
        def m(reg, val):
            a(f"s_mov_b32 s{reg}, 0x{val & 0xffffffff:08x}\ns_mov_b32 s{reg+1}, 0x{val >> 32:08x}")
        m(mD, 0x0001000300030003); m(mQ, 0x000F000F000F000F); m(mEVEN, 0x5555555555555555); m(mODD, 0xAAAAAAAAAAAAAAAA)
        m(mEV32, 0x0000000055555555); m(m0_32, 0x0000000100000001); m(mLOW4, 0xF)
        a(f"s_mov_b32 s{sC}, 0x3e0293ee")
        a(f"s_mul_i32 s{sFS}, s{sG}, 7\ns_add_u32 s{sFS}, s{sFS}, s{sS}")
        a(f"s_mov_b32 s{pIT}, s{pWS}\ns_mov_b32 s{pIT+1}, s{pWS+1}")
        if self.c.stamps:
            a(f"s_lshl_b32 s{sT0}, s2, 8\ns_add_u32 s{sT0}, s{sT0}, {STAMP_OFF}\ns_add_u32 s{pST}, s{pWS}, s{sT0}\ns_addc_u32 s{pST+1}, s{pWS+1}, 0")
        n, j, p, tp, t0, t1 = T+22, T+23, T+24, T+25, T+26, T+27
        n, j, p, tp, t0, t1 = 64, 65, 66, 67, 68, 69
        a(f"v_and_b32 v{n}, 15, v{vL}\nv_lshrrev_b32 v{j}, 4, v{vL}\nv_bfe_u32 v{p}, v{vL}, 1, 3\nv_and_b32 v{tp}, 1, v{vL}")
        for r in range(4): a(f"v_mov_b32 v{vONE+r}, 0x3f803f80")
        a(f"v_lshl_add_u32 v{t0}, v{tp}, 2, v{j}\nv_lshlrev_b32 v{t0}, 4, v{t0}\nv_lshl_add_u32 v{t0}, v{p}, 10, v{t0}")
        a(f"s_lshl_b32 s{sT0}, s{sB}, 13\ns_lshl_b32 s{sT1}, s{sW}, 8\ns_add_u32 s{sT0}, s{sT0}, s{sT1}\nv_add_u32 v{vXY}, s{sT0}, v{t0}")
        a(f"s_lshl_b32 s{sT0}, s{sGRP}, 13\ns_add_u32 s{sT0}, s{sT0}, s{sT1}\nv_add_u32 v{vO}, s{sT0}, v{t0}")
        a(f"v_lshl_add_u32 v{t0}, v{j}, 1, v{n}\nv_and_b32 v{t0}, 7, v{t0}\nv_lshlrev_b32 v{t0}, 3, v{t0}")
        a(f"s_lshl_b32 s{sT0}, s{sGRP}, 8\ns_lshl_b32 s{sT1}, s{sW}, 6\ns_add_u32 s{sT0}, s{sT0}, s{sT1}\nv_add_u32 v{vOS}, s{sT0}, v{t0}")
        a(f"s_lshl_b32 s{sT1}, s{sS}, 3\ns_add_u32 s{sT0}, s{sT0}, s{sT1}\nv_mov_b32 v{vPOS}, s{sT0}")
        a(f"v_lshl_add_u32 v{t0}, v{n}, 2, v{j}\nv_lshlrev_b32 v{t0}, 4, v{t0}")
        a(f"s_mul_i32 s{sT0}, s{sS}, 28\ns_mul_i32 s{sT1}, s{sW}, 7\ns_add_u32 s{sT0}, s{sT0}, s{sT1}\ns_lshl_b32 s{sT0}, s{sT0}, 4")
        a(f"s_lshl_b32 s{sT1}, s{sB}, 12\ns_add_u32 s{sT0}, s{sT0}, s{sT1}\nv_add_u32 v{vH}, s{sT0}, v{t0}")
        a(f"v_lshlrev_b32 v{t0}, 4, v{n}\nv_lshl_add_u32 v{t0}, v{j}, 6, v{t0}\ns_lshl_b32 s{sT0}, s{sGRP}, 10\nv_add_u32 v{vQ}, s{sT0}, v{t0}")
        a(f"s_and_b32 s{sT1}, s{sS}, 1\ns_lshl_b32 s{sT1}, s{sT1}, 6\nv_add_u32 v{t0}, s{sT1}, v{vL}")
        a(f"v_lshrrev_b32 v{t1}, 5, v{t0}\nv_lshlrev_b32 v{t1}, 8, v{t1}")
        a(f"v_bfe_u32 v{vPQ}, v{t0}, 3, 2\nv_lshl_add_u32 v{t1}, v{vPQ}, 6, v{t1}")
        a(f"v_and_b32 v{t0}, 7, v{t0}\nv_lshl_add_u32 v{t1}, v{t0}, 1, v{t1}")
        a(f"s_lshr_b32 s{sT1}, s{sS}, 1\ns_lshl_b32 s{sT1}, s{sT1}, 4\ns_add_u32 s{sT0}, s{sT0}, s{sT1}\nv_add_u32 v{vPQ}, s{sT0}, v{t1}")
        a(f"s_lshl_b32 s{sT0}, s{sGRP}, 13\ns_lshl_b32 s{sT1}, s{sS}, 10\ns_add_u32 s{sT0}, s{sT0}, s{sT1}\ns_lshl_b32 s{sT1}, s{sW}, 8\ns_add_u32 s{sT0}, s{sT0}, s{sT1}")
        a(f"v_lshlrev_b32 v{t0}, 2, v{vL}\nv_add_u32 v{vPO}, s{sT0}, v{t0}")
        a(f"s_lshl_b32 s{sT0}, s{sGRP}, 11\ns_lshl_b32 s{sT1}, s{sS}, 8\ns_add_u32 s{sT0}, s{sT0}, s{sT1}\nv_add_u32 v{vPZ}, s{sT0}, v{t0}")
        a(f"s_lshl_b32 s{sT0}, s{sW}, 8\ns_add_u32 s{sT0}, s{sT0}, {E}\nv_add_u32 v{vPW}, s{sT0}, v{t0}\nv_add_u32 v{vPR}, {E}, v{t0}")
        a(f"v_mov_b32 v{vES}, {E}")
        a(f"v_lshlrev_b32 v{t1}, 1, v{vL}")
        a(f"s_lshl_b32 s{sT0}, s{sB}, 13\ns_lshl_b32 s{sT1}, s{sG}, 10\ns_add_u32 s{sT0}, s{sT0}, s{sT1}\ns_lshl_b32 s{sT1}, s{sS}, 7\ns_add_u32 s{sT0}, s{sT0}, s{sT1}\nv_add_u32 v{vPX}, s{sT0}, v{t1}")
        a(f"s_lshl_b32 s{sT0}, s{sB}, 13\ns_lshl_b32 s{sT1}, s{sS}, 10\ns_add_u32 s{sT0}, s{sT0}, s{sT1}\ns_lshl_b32 s{sT1}, s{sG}, 7\ns_add_u32 s{sT0}, s{sT0}, s{sT1}\nv_add_u32 v{vPY}, s{sT0}, v{t1}")
        a(f"s_lshl_b32 s{sT0}, s{sB}, 12\ns_lshl_b32 s{sT1}, s{sFS}, 6\ns_add_u32 s{sT0}, s{sT0}, s{sT1}\nv_add_u32 v{vPH}, s{sT0}, v{t1}")
        a(f"s_lshl_b32 s{sT0}, s{sW}, 11\ns_add_u32 s{sT0}, s{sT0}, {OB}\nv_and_b32 v{t1}, 3, v{n}\nv_lshlrev_b32 v{t1}, 9, v{t1}\nv_lshl_add_u32 v{t1}, v{j}, 4, v{t1}\nv_add_u32 v{vOD}, s{sT0}, v{t1}")
        a(f"s_lshl_b32 s{sT0}, s{sW}, 9\ns_add_u32 s{sT0}, s{sT0}, {OB}\nv_lshlrev_b32 v{t1}, 3, v{vL}\nv_add_u32 v{vOC}, s{sT0}, v{t1}")
        a(f"s_lshl_b32 s{sT0}, s{sW}, 3\ns_add_u32 s{sT1}, s{sT0}, {SB}\nv_and_b32 v{t1}, 3, v{n}\nv_lshlrev_b32 v{t1}, 5, v{t1}\nv_add_u32 v{vSBW}, s{sT1}, v{t1}")
        a(f"s_add_u32 s{sT1}, s{sT0}, {STQ}\nv_lshrrev_b32 v{t1}, 5, v{vL}\nv_lshlrev_b32 v{t1}, 2, v{t1}\nv_add_u32 v{vSTW}, s{sT1}, v{t1}")
        a(f"s_lshl_b32 s{sT0}, s{sW}, 5\ns_add_u32 s{sT0}, s{sT0}, {SB}\nv_mov_b32 v{vSBR}, s{sT0}")
        a(f"s_lshl_b32 s{sT0}, s{sW}, 8\ns_add_u32 s{sT0}, s{sT0}, {PD}\nv_lshlrev_b32 v{t1}, 4, v{n}\nv_add_u32 v{vDW}, s{sT0}, v{t1}")
        a(f"v_lshl_add_u32 v{t1}, v{j}, 2, v{t1}\nv_add_u32 v{vDR}, {PD}, v{t1}")
        a(f"s_lshl_b32 s{sT0}, s{sB}, 10\ns_lshl_b32 s{sT1}, s{sS}, 7\ns_add_u32 s{sT0}, s{sT0}, s{sT1}\nv_lshlrev_b32 v{t1}, 1, v{vL}\nv_add_u32 v{t1}, s{sT0}, v{t1}")
        l = self.only_wave(3)
        a(f"global_load_ushort v{vRES}, v{t1}, {sp(pX)}\ns_waitcnt vmcnt(0)\nv_lshlrev_b32 v{vRES}, 16, v{vRES}")
        a(f"{l}:")

    def q_phase(self, it):
        a = self.a; c = self.c
        if it == 0:
            l = self.only_loader(); a("s_waitcnt vmcnt(32)"); a(f"{l}:")
            l = a.lbl("Lnl"); a(f"s_cmp_lt_u32 s{sW}, 2\ns_cbranch_scc1 {l}\ns_waitcnt vmcnt(0)"); a(f"{l}:")
            a("s_barrier")
            self.stamp("wq landed")
            self.w_read_addrs(BUF_A, 14)
            self.w_reads(Wq, 4, range(4))
            self.barrier()
            l = self.only_loader()
            self.srd(pV, 67108864)
            self.kv_base()
            a(f"v_lshrrev_b32 v{T+5}, 4, v{vL}\nv_and_b32 v{T+6}, 15, v{vL}\nv_lshlrev_b32 v{T+7}, 1, v{T+5}\nv_xor_b32 v{T+7}, v{T+6}, v{T+7}")
            a(f"v_lshlrev_b32 v{T+7}, 4, v{T+7}\nv_lshl_add_u32 v{T+8}, v{T+5}, 8, v{T+7}\nv_xor_b32 v{T+9}, 128, v{T+8}")
            for u in range(2):
                for wl in range(2):
                    a(f"s_lshl_b32 s{sT0}, s{sW}, 15\ns_add_u32 s{sT0}, s{sT0}, {(16*wl+8*u)*1024}")
                    a(f"s_add_u32 s{sOFF}, s{sT2}, s{sT0}\ns_add_u32 m0, s{sT0}, {BUF_A}")
                    self.dma_loop(4, [T+8, T+9], 1024, c.kv_nt)
            a(f"{l}:")
            o0 = ACC2+32
            for r in range(4): a(f"v_mov_b32 v{o0+r}, 0")
            a(f"s_mov_b64 exec, {sp(mA2)}")
            for r in range(4): a(f"v_mov_b32 v{o0+r}, 0x3f803f80")
            a("s_mov_b64 exec, -1")
            self.gemv(Wq, PQC, A0r=o0, A1r=o0)
        else:
            self.region(R_YZ - IT_STRIDE)
            self.poll([f"global_load_dwordx4 {v(A0,4)}, v{vXY}, {sp(pR)} sc1", f"global_load_dwordx4 {v(A1,4)}, v{vXY}, {sp(pR)} offset:128 sc1"],
                      list(range(A0, A0+8)), delay=c.d_Y)
            self.stamp("Y got")
        self.gemv(Wq, PQ, stats=STQ)
        if it == 0:
            l = self.only_wave(3)
            lp = a.lbl("Lfl"); ld = a.lbl("Lfd")
            a(f"v_lshlrev_b32 v{T}, 2, v{vL}\ns_mov_b32 s{sSPIN}, 0")
            a(f"{lp}:")
            a(f"global_load_dword v{T+1}, v{T}, {sp(pDBG)} sc1")
            a(f"s_add_u32 s{sSPIN}, s{sSPIN}, 1\ns_cmp_ge_u32 s{sSPIN}, {c.spin_limit}\ns_cbranch_scc1 {ld}")
            a("s_waitcnt vmcnt(0)")
            a(f"v_and_b32 v{T+2}, 0xff, v{T+1}\nv_and_b32 v{T+3}, 7, v{vL}")
            a(f"v_cmp_eq_u32 vcc, 0, v{T+3}\ns_mov_b64 {sp(sT3)}, vcc")
            a(f"v_cmp_gt_u32 vcc, 32, v{T+2}\ns_and_b64 vcc, vcc, {sp(sT3)}")
            a(f"s_cbranch_vccz {ld}\ns_sleep 4\ns_branch {lp}")
            a(f"{ld}:")
            a("s_waitcnt vmcnt(0)")
            a(f"s_lshl_b32 s{sT0}, s{sG}, 3\ns_mov_b32 m0, s{sT0}\nv_readlane_b32 s{sT1}, v{T+1}, m0\ns_nop 3")
            a(f"s_bfe_u32 s{sT0}, s{sT1}, 0x90008\ns_lshr_b32 s{sT1}, s{sT1}, 17")
            a(f"s_mul_i32 s{sT0}, s{sT0}, s{sT0}\ns_lshl_b32 s{sT1}, s{sT1}, 5\ns_cmp_eq_u32 s{sT0}, s{sT1}\ns_cselect_b32 s{sLOC}, 1, 0")
            a(f"v_mov_b32 v{T}, s{sLOC}\nds_write_b32 v{vES}, v{T} offset:{FL-E}")
            a(f"{l}:")
        self.barrier()
        if it == 0:
            a(f"ds_read_b32 v{T+20}, v{vES} offset:{FL-E}\ns_waitcnt lgkmcnt(0)\nv_readfirstlane_b32 s{sLOC}, v{T+20}\ns_nop 3")
        l = self.only_wave(3)
        if it == 0:
            self.final_sum(PQC, vCQ); a("s_waitcnt lgkmcnt(0)"); self.final_sum2(vCQ)
        self.final_sum(PQ, T+12)
        self.ln_fix(STQ, T+12, vCQ)
        self.pack_pairs(T+12, T+13)
        self.region(R_Q)
        a(f"s_mov_b64 exec, {sp(mEVEN)}")
        self.store_local(f"global_store_dword v{vPQ}, v{T+13}, {sp(pR)}")
        a("s_mov_b64 exec, -1")
        self.stamp("Q pub")
        if it == 0:
            a(f"s_lshl_b32 s{sT0}, s{sGRP}, 10\nv_lshlrev_b32 v{T+14}, 4, v{vL}\nv_add_u32 v{T+15}, s{sT0}, v{T+14}")
            self.poll([f"global_load_dwordx4 {v(T+16,4)}, v{T+15}, {sp(pR)} sc1"], list(range(T+16, T+20)))
            a(f"v_add_u32 v{T+14}, {QB}, v{T+14}\nds_write_b128 v{T+14}, {v(T+16,4)}")
        else:
            lg = a.lbl("Lrg"); a(f"s_cmp_lg_u32 s{sG}, 0\ns_cbranch_scc1 {lg}")
            a(f"s_lshl_b32 s{sT0}, s{sB}, 13\ns_lshl_b32 s{sT1}, s{sS}, 7\ns_add_u32 s{sT0}, s{sT0}, s{sT1}\nv_lshlrev_b32 v{T+20}, 1, v{vL}\nv_add_u32 v{T+20}, s{sT0}, v{T+20}")
            self.sum8_resid(R_YZ - IT_STRIDE, T+20)
            a(f"{lg}:")
        a(f"{l}:")

    def attention(self, it):
        a = self.a; c = self.c
        if it == 0:
            l = self.only_loader(); a("s_waitcnt vmcnt(32)"); a(f"{l}:")
            self.barrier()
            self.stamp("K landed")
            a(f"v_and_b32 v{T}, 15, v{vL}\nv_lshrrev_b32 v{T+1}, 4, v{vL}\nv_xor_b32 v{T+2}, v{T}, v{T+1}\nv_lshlrev_b32 v{T+2}, 4, v{T+2}\nv_lshl_add_u32 v{T+2}, v{T}, 8, v{T+2}")
            a(f"s_lshl_b32 s{sT0}, s{sW}, 14\ns_add_u32 s{sT0}, s{sT0}, {BUF_B}\nv_add_u32 v{T+2}, s{sT0}, v{T+2}")
            for i in range(4): a(f"v_xor_b32 v{T+4+i}, {64*i}, v{T+2}")
            a(f"v_and_b32 v{T}, 3, v{T}\nv_lshl_add_u32 v{T}, v{T+1}, 2, v{T}\nv_lshlrev_b32 v{T}, 4, v{T}\nv_add_u32 v{T}, {QB}, v{T}")
            for i in range(4): a(f"ds_read_b128 {v(QF+4*i,4)}, v{T} offset:{256*i}")
            for Tt in range(4):
                for i in range(4): a(f"ds_read_b128 {a_(aK+16*Tt+4*i,4)}, v{T+4+i} offset:{Tt*4096}")
            self.barrier()
            l = self.only_loader()
            self.srd(pWO, 4194304)
            a(f"v_lshrrev_b32 v{T}, 3, v{vL}\nv_and_b32 v{T+1}, 7, v{vL}\nv_bfe_u32 v{T+2}, v{vL}, 4, 1\nv_lshlrev_b32 v{T+2}, 1, v{T+2}\nv_xor_b32 v{T+1}, v{T+1}, v{T+2}")
            a(f"v_lshlrev_b32 v{T+1}, 4, v{T+1}\nv_lshl_add_u32 v{T+3}, v{T}, 10, v{T+1}\nv_xor_b32 v{T+4}, 64, v{T+3}")
            a(f"s_lshl_b32 s{sOFF}, s{sG}, 19\ns_lshl_b32 s{sT0}, s{sS}, 7\ns_add_u32 s{sOFF}, s{sOFF}, s{sT0}\ns_lshl_b32 s{sT0}, s{sW}, 18\ns_add_u32 s{sOFF}, s{sOFF}, s{sT0}")
            a(f"s_lshl_b32 s{sT0}, s{sW}, 15\ns_add_u32 m0, s{sT0}, {BUF_B}")
            self.dma_loop(16, [T+3, T+4], 8192, c.w_nt)
            a(f"{l}:")
        else:
            self.region(R_Q)
            self.poll([f"global_load_dwordx4 {v(QF+4*i,4)}, v{vQ}, {sp(pR)} offset:{256*i} sc1" for i in range(4)],
                      list(range(QF, QF+16)), mask=mQ, delay=c.d_Q)
            self.stamp("Q got")
        for Tt in range(4):
            for i in range(4):
                a(f"{MF} {v(SA+4*Tt,4)}, {a_(aK+16*Tt+4*i,4)}, {v(QF+4*i,4)}, {'0' if i==0 else v(SA+4*Tt,4)}")
        mx, t = T, T+1
        a(f"v_max3_f32 v{mx}, v{SA}, v{SA+1}, v{SA+2}")
        r = SA+3
        while r < SA+16:
            if r+1 < SA+16: a(f"v_max3_f32 v{mx}, v{mx}, v{r}, v{r+1}"); r += 2
            else: a(f"v_max_f32 v{mx}, v{mx}, v{r}"); r += 1
        a(f"v_mov_b32 v{t}, v{mx}\nv_permlane32_swap_b32 v{mx}, v{t}\nv_max_f32 v{mx}, v{mx}, v{t}")
        a(f"v_mov_b32 v{t}, v{mx}\nv_permlane16_swap_b32 v{mx}, v{t}\nv_max_f32 v{mx}, v{mx}, v{t}")
        mc = T+2
        a(f"v_mul_f32 v{mc}, s{sC}, v{mx}")
        def pexp(u):
            for Tt in (2*u, 2*u+1):
                for r in range(4): a(f"v_fma_f32 v{SA+4*Tt+r}, v{SA+4*Tt+r}, s{sC}, -v{mc}")
                for r in range(4): a(f"v_exp_f32 v{SA+4*Tt+r}, v{SA+4*Tt+r}")
                h = (Tt & 1)*2
                a(f"v_cvt_pk_bf16_f32 v{PP+4*u+h}, v{SA+4*Tt}, v{SA+4*Tt+1}\nv_cvt_pk_bf16_f32 v{PP+4*u+h+1}, v{SA+4*Tt+2}, v{SA+4*Tt+3}")
        pexp(0); pexp(1)
        def vread(u):
            b = T+4
            a(f"v_lshrrev_b32 v{b}, 4, v{vL}\nv_bfe_u32 v{b+1}, v{vL}, 2, 2\nv_lshl_add_u32 v{b}, v{b}, 2, v{b+1}")
            a(f"v_and_b32 v{b+1}, 7, v{b}\nv_lshlrev_b32 v{b+1}, 1, v{b+1}\nv_bfe_u32 v{b+2}, v{vL}, 1, 1\nv_xor_b32 v{b+1}, v{b+1}, v{b+2}")
            a(f"v_lshlrev_b32 v{b+1}, 4, v{b+1}\nv_lshl_add_u32 v{b}, v{b}, 8, v{b+1}\nv_and_b32 v{b+1}, 1, v{vL}\nv_lshl_add_u32 v{b}, v{b+1}, 3, v{b}")
            a(f"s_lshl_b32 s{sT0}, s{sW}, 14\ns_add_u32 s{sT0}, s{sT0}, {BUF_A}\nv_add_u32 v{b}, s{sT0}, v{b}")
            for ct in range(8): a(f"v_xor_b32 v{b+1+ct}, {32*ct}, v{b}")
            for ct in range(8):
                for h in range(2):
                    d = aV+32*u+4*ct+2*h
                    a(f"ds_read_b64_tr_b16 a[{d}:{d+1}], v{b+1+ct} offset:{u*8192+h*4096}")
            a("s_waitcnt lgkmcnt(0)")
        for u in range(2):
            if it == 0:
                l = self.only_loader(); a(f"s_waitcnt vmcnt({48 if u==0 else 32})"); a(f"{l}:")
                a("s_barrier")
                self.stamp(f"V{u} landed")
                vread(u)
            for ct in range(8):
                a(f"{MF} {v(OA+4*ct,4)}, {a_(aV+32*u+4*ct,4)}, {v(PP+4*u,4)}, {'0' if u==0 else v(OA+4*ct,4)}")
            a(f"{MF} {v(LA,4)}, {v(vONE,4)}, {v(PP+4*u,4)}, {'0' if u==0 else v(LA,4)}")
        a(f"s_mov_b64 exec, {sp(mQ)}")
        for ct in range(8): a(f"ds_write_b128 v{vOD}, {v(OA+4*ct,4)} offset:{64*ct}")
        a(f"s_mov_b64 exec, {sp(mLOW4)}")
        a(f"v_mov_b32 v{mc+1}, v{LA}")
        a(f"ds_write_b64 v{vSBW}, {v(mc,2)}")
        a("s_mov_b64 exec, -1")
        self.barrier()
        a(f"ds_read_b128 {v(T+4,4)}, v{vSBR}\nds_read_b128 {v(T+8,4)}, v{vSBR} offset:16")
        for ws in range(4): a(f"ds_read_b64 {v(T+12+2*ws,2)}, v{vOC} offset:{2048*ws}")
        a("s_waitcnt lgkmcnt(4)")
        M = T
        a(f"v_max3_f32 v{M}, v{T+4}, v{T+6}, v{T+8}\nv_max_f32 v{M}, v{M}, v{T+10}")
        for i in range(4): a(f"v_sub_f32 v{T+4+2*i}, v{T+4+2*i}, v{M}")
        for i in range(4): a(f"v_exp_f32 v{T+4+2*i}, v{T+4+2*i}")
        a(f"v_mul_f32 v{M+1}, v{T+4}, v{T+5}")
        for i in range(1,4): a(f"v_fmac_f32 v{M+1}, v{T+4+2*i}, v{T+5+2*i}")
        a("s_waitcnt lgkmcnt(0)")
        a(f"v_mul_f32 v{T+2}, v{T+4}, v{T+12}\nv_mul_f32 v{T+3}, v{T+4}, v{T+13}")
        for i in range(1,4): a(f"v_fmac_f32 v{T+2}, v{T+4+2*i}, v{T+12+2*i}\nv_fmac_f32 v{T+3}, v{T+4+2*i}, v{T+13+2*i}")
        a(f"v_cvt_pk_bf16_f32 v{T+2}, v{T+2}, v{T+3}")
        self.region(R_O)
        self.store_local(f"global_store_dword v{vPO}, v{T+2}, {sp(pR)}")
        self.region(R_OS)
        a("s_mov_b64 exec, 1")
        self.store_local(f"global_store_dwordx2 v{vPOS}, {v(M,2)}, {sp(pR)}")
        a("s_mov_b64 exec, -1")
        self.stamp("O pub")

    def o_phase(self, it):
        a = self.a; c = self.c
        self.region(R_O)
        a(f"s_add_u32 s{sT3}, s{pIT}, {R_OS}\ns_addc_u32 s{sT3+1}, s{pIT+1}, 0")
        self.poll([f"global_load_dwordx4 {v(A0,4)}, v{vO}, {sp(pR)} sc1", f"global_load_dwordx4 {v(A1,4)}, v{vO}, {sp(pR)} offset:128 sc1",
                   f"global_load_dwordx2 {v(vOSD,2)}, v{vOS}, {sp(sT3)} sc1"], list(range(A0, A0+10)), delay=c.d_O)
        self.stamp("O got")
        if it == 0:
            l = self.only_loader()
            l7 = a.lbl("Ls7"); a(f"s_cmp_eq_u32 s{sS}, 7\ns_cbranch_scc1 {l7}")
            self.g_dma()
            a(f"{l7}:"); a(f"{l}:")
            a("s_barrier")
            self.w_read_addrs(BUF_B, 14)
            self.w_reads(Wo, 4, range(4))
            a("s_waitcnt lgkmcnt(0)")
        mm, al, dn = T+16, T+17, T+18
        wA, wB = T+19, T+20
        pre = [f"v_max_f32_dpp v{mm}, v{vOSD}, v{vOSD} row_ror:4 {DPP}",
               f"v_max_f32_dpp v{mm}, v{mm}, v{mm} row_ror:2 {DPP}",
               f"v_max_f32_dpp v{mm}, v{mm}, v{mm} row_ror:1 {DPP}",
               f"v_sub_f32 v{al}, v{vOSD}, v{mm}",
               f"v_exp_f32 v{al}, v{al}",
               f"v_mul_f32 v{dn}, v{al}, v{vOSD+1}",
               f"v_add_f32_dpp v{dn}, v{dn}, v{dn} row_ror:4 {DPP}",
               f"v_add_f32_dpp v{dn}, v{dn}, v{dn} row_ror:2 {DPP}",
               f"v_add_f32_dpp v{dn}, v{dn}, v{dn} row_ror:1 {DPP}",
               f"v_rcp_f32 v{dn}, v{dn}",
               f"v_mul_f32 v{al}, v{al}, v{dn}",
               f"v_mov_b32_dpp v{wA}, v{al} row_newbcast:0 {DPP}",
               f"v_mov_b32_dpp v{wB}, v{al} row_newbcast:1 {DPP}"]
        self.gemv(Wo, PO, weighted=(wA, wB), pre_ops=pre)
        self.barrier()
        l = self.only_wave(3)
        self.final_sum(PO, T+12); a("s_waitcnt lgkmcnt(0)"); self.final_sum2(T+12)
        lg = a.lbl("Lrg"); a(f"s_cmp_lg_u32 s{sG}, 0\ns_cbranch_scc1 {lg}\nv_add_f32 v{T+12}, v{T+12}, v{vRES}"); a(f"{lg}:")
        self.pack_pairs(T+12, T+13)
        self.region(R_X)
        a(f"s_mov_b64 exec, {sp(mEVEN)}")
        a(f"global_store_dword v{vPX}, v{T+13}, {sp(pR)} sc1")
        a("s_mov_b64 exec, -1")
        self.stamp("X pub")
        a(f"{l}:")

    def g_dma(self):
        a = self.a; c = self.c
        a(f"v_lshrrev_b32 v{T}, 3, v{vL}\nv_and_b32 v{T+1}, 7, v{vL}\nv_bfe_u32 v{T+2}, v{vL}, 4, 1\nv_lshlrev_b32 v{T+2}, 1, v{T+2}\nv_xor_b32 v{T+1}, v{T+1}, v{T+2}")
        a(f"v_cmp_gt_u32 vcc, 4, v{T+1}")
        a(f"v_and_b32 v{T+1}, 3, v{T+1}\nv_lshlrev_b32 v{T+1}, 4, v{T+1}\nv_mul_u32_u24 v{T}, 3584, v{T}\nv_add_u32 v{T}, v{T}, v{T+1}")
        a(f"s_lshl_b32 s{sT0}, s{sFS}, 6\ns_mul_i32 s{sT1}, s{sW}, {32*8*3584}\ns_add_u32 s{sT0}, s{sT0}, s{sT1}\nv_add_u32 v{T}, s{sT0}, v{T}")
        a(f"v_mov_b32 v{T+2}, s{pUP}\nv_mov_b32 v{T+3}, s{pUP+1}\nv_mov_b32 v{T+4}, s{pGATE}\nv_mov_b32 v{T+5}, s{pGATE+1}")
        a(f"v_cndmask_b32 v{T+6}, v{T+2}, v{T+4}, vcc\nv_cndmask_b32 v{T+7}, v{T+3}, v{T+5}, vcc")
        a(f"v_cndmask_b32 v{T+8}, v{T+4}, v{T+2}, vcc\nv_cndmask_b32 v{T+9}, v{T+5}, v{T+3}, vcc")
        a(f"v_add_co_u32 v{T+6}, vcc, v{T+6}, v{T}\nv_addc_co_u32 v{T+7}, vcc, 0, v{T+7}, vcc")
        a(f"v_add_u32 v{T}, {8*3584}, v{T}")
        a(f"v_add_co_u32 v{T+8}, vcc, v{T+8}, v{T}\nv_addc_co_u32 v{T+9}, vcc, 0, v{T+9}, vcc")
        a(f"s_lshl_b32 s{sT0}, s{sW}, 15\ns_add_u32 m0, s{sT0}, {BUF_A}")
        fl = " nt" if c.w_nt else ""
        l = a.lbl("Lgd")
        a(f"s_mov_b32 s{sCNT}, 16\ns_mov_b32 s{sT1}, {16*3584}")
        a(f"{l}:")
        for r in (T+6, T+8):
            a(f"global_load_lds_dwordx4 {v(r,2)}, off{fl}")
            a(f"s_add_u32 m0, m0, 1024")
            a(f"v_add_co_u32 v{r}, vcc, s{sT1}, v{r}\nv_addc_co_u32 v{r+1}, vcc, 0, v{r+1}, vcc")
        a(f"s_sub_u32 s{sCNT}, s{sCNT}, 1\ns_cmp_lg_u32 s{sCNT}, 0\ns_cbranch_scc1 {l}")

    def d_dma(self):
        a = self.a; c = self.c
        self.srd(pDOWN, 1835008)
        a(f"v_lshrrev_b32 v{T}, 3, v{vL}\nv_and_b32 v{T+1}, 7, v{vL}\nv_bfe_u32 v{T+2}, v{vL}, 4, 1\nv_lshlrev_b32 v{T+2}, 1, v{T+2}\nv_xor_b32 v{T+1}, v{T+1}, v{T+2}")
        a(f"v_lshlrev_b32 v{T+1}, 4, v{T+1}\nv_lshl_add_u32 v{T+3}, v{T}, 10, v{T+1}\nv_xor_b32 v{T+4}, 64, v{T+3}")
        for wl in range(2):
            a(f"s_lshl_b32 s{sT0}, s{sW}, 1\ns_add_u32 s{sT0}, s{sT0}, {wl}\ns_mul_i32 s{sT1}, s{sT0}, 56\ns_mul_i32 s{sOFF}, s{sS}, 224\ns_add_u32 s{sOFF}, s{sOFF}, s{sT1}")
            a(f"s_lshl_b32 s{sOFF}, s{sOFF}, 10\ns_lshl_b32 s{sT1}, s{sG}, 7\ns_add_u32 s{sOFF}, s{sOFF}, s{sT1}")
            a(f"s_lshl_b32 s{sT0}, s{sT0}, 13\ns_add_u32 m0, s{sT0}, {BUF_B}")
            self.dma_loop(4, [T+3, T+4], 8192, c.w_nt)

    def g_phase(self, it):
        a = self.a; c = self.c
        l7 = a.lbl("Lg7")
        a(f"s_cmp_eq_u32 s{sS}, 7\ns_cbranch_scc1 {l7}")
        self.region(R_X)
        self.poll([f"global_load_dwordx4 {v(A0,4)}, v{vXY}, {sp(pR)} sc1", f"global_load_dwordx4 {v(A1,4)}, v{vXY}, {sp(pR)} offset:128 sc1"],
                  list(range(A0, A0+8)), delay=c.d_X)
        self.stamp("X got")
        if it == 0:
            l = self.only_loader(); self.d_dma(); a(f"{l}:")
            a("s_barrier")
            self.w_read_addrs(BUF_A, 14)
            self.w_reads(Wg, 4, range(4))
            a("s_waitcnt lgkmcnt(0)")
            o0 = ACC2+32
            for r in range(4): a(f"v_mov_b32 v{o0+r}, 0")
            a(f"s_mov_b64 exec, {sp(mA2)}")
            for r in range(4): a(f"v_mov_b32 v{o0+r}, 0x3f803f80")
            a("s_mov_b64 exec, -1")
            self.gemv(Wg, PGC, A0r=o0, A1r=o0)
        self.gemv(Wg, PG, stats=STG)
        self.barrier()
        l = self.only_wave(3)
        if it == 0:
            self.final_sum(PGC, vCG); a("s_waitcnt lgkmcnt(0)"); self.final_sum2(vCG)
        self.final_sum(PG, T+12)
        self.ln_fix(STG, T+12, vCG)
        z, u_ = T+12, T+13
        a(f"v_mov_b32 v{u_}, v{z}\nv_permlane32_swap_b32 v{z}, v{u_}")
        a(f"v_mul_f32 v{z}, 0xbfb8aa3b, v{z}\nv_exp_f32 v{z}, v{z}\nv_add_f32 v{z}, 1.0, v{z}\nv_rcp_f32 v{z}, v{z}\nv_mul_f32 v{z}, v{z}, v{u_}")
        self.pack_pairs(z, T+14)
        self.region(R_H)
        a(f"s_mov_b64 exec, {sp(mEV32)}")
        a(f"global_store_dword v{vPH}, v{T+14}, {sp(pR)} sc1")
        a("s_mov_b64 exec, -1")
        self.stamp("H pub")
        lg = a.lbl("Lrs"); a(f"s_cmp_lg_u32 s{sS}, 0\ns_cbranch_scc1 {lg}")
        a(f"s_lshl_b32 s{sT0}, s{sB}, 13\ns_lshl_b32 s{sT1}, s{sG}, 7\ns_add_u32 s{sT0}, s{sT0}, s{sT1}\nv_lshlrev_b32 v{T+20}, 1, v{vL}\nv_add_u32 v{T+20}, s{sT0}, v{T+20}")
        self.sum8_resid(R_X, T+20)
        a(f"{lg}:")
        a(f"{l}:")
        if it == 0:
            lskip = a.lbl("Lgs"); a(f"s_branch {lskip}")
            a(f"{l7}:")
            l = self.only_loader(); self.d_dma(); a(f"{l}:")
            a(f"{lskip}:")
        else:
            a(f"{l7}:")

    def d_phase(self, it):
        a = self.a; c = self.c
        for r in range(4): a(f"v_mov_b32 v{A0+r}, 0")
        self.region(R_H)
        self.poll([f"global_load_dwordx4 {v(A0,4)}, v{vH}, {sp(pR)} sc1"], list(range(A0, A0+4)), mask=mD, delay=c.d_H)
        self.stamp("H got")
        if it == 0:
            a("s_barrier")
            self.w_read_addrs(BUF_B, 13)
            self.w_reads(Wd, 2, range(4))
            a("s_waitcnt lgkmcnt(0)")
        for ct in range(4):
            for ts in range(2):
                a(f"{MF} {v(ACC+(ct*2+ts)*4,4)}, {v(A0,4)}, {Wd(ts,ct)}, 0")
        val = T+12
        for ct in range(4): a(f"v_add_f32 v{val+ct}, v{ACC+ct*8}, v{ACC+ct*8+5}")
        a(f"s_mov_b32 s{sT3}, 0xffff\ns_mov_b32 s{sT3+1}, 0\ns_mov_b64 exec, {sp(sT3)}")
        a(f"ds_write_b128 v{vDW}, {v(val,4)}")
        a("s_mov_b64 exec, -1")
        self.barrier()
        l = self.only_wave(3)
        a(f"ds_read2st64_b32 {v(T,2)}, v{vDR} offset0:0 offset1:1\nds_read2st64_b32 {v(T+2,2)}, v{vDR} offset0:2 offset1:3\ns_waitcnt lgkmcnt(0)")
        self.final_sum2(T+12)
        lg = a.lbl("Lrs"); a(f"s_cmp_lg_u32 s{sS}, 0\ns_cbranch_scc1 {lg}\nv_add_f32 v{T+12}, v{T+12}, v{vRES}"); a(f"{lg}:")
        self.region(R_YZ)
        if it == 0:
            self.pack_pairs(T+12, T+13)
            a(f"s_mov_b64 exec, {sp(mEVEN)}")
            a(f"global_store_dword v{vPY}, v{T+13}, {sp(pR)} sc1")
            a("s_mov_b64 exec, -1")
            self.stamp("Y pub")
        else:
            self.store_local(f"global_store_dword v{vPZ}, v{T+12}, {sp(pR)}")
            self.stamp("Z pub")
            lz = a.lbl("Lz"); a(f"s_cmp_lg_u32 s{sS}, 0\ns_cbranch_scc1 {lz}")
            a(f"s_lshl_b32 s{sT0}, s{sGRP}, 11\nv_lshlrev_b32 v{T+20}, 2, v{vL}\nv_add_u32 v{T+20}, s{sT0}, v{T+20}")
            self.poll([f"global_load_dword v{64+p}, v{T+20}, {sp(pR)} offset:{256*p} sc1" for p in range(8)], list(range(64, 72)), delay=c.d_Z)
            a("v_add_f32 v64, v64, v65\nv_add_f32 v66, v66, v67\nv_add_f32 v68, v68, v69\nv_add_f32 v70, v70, v71\nv_add_f32 v64, v64, v66\nv_add_f32 v68, v68, v70")
            a(f"v_add_f32 v{T+12}, v64, v68")
            self.pack_pairs(T+12, T+13)
            a(f"s_lshl_b32 s{sT0}, s{sB}, 10\ns_lshl_b32 s{sT1}, s{sG}, 7\ns_add_u32 s{sT0}, s{sT0}, s{sT1}\nv_lshlrev_b32 v{T+14}, 1, v{vL}\nv_add_u32 v{T+14}, s{sT0}, v{T+14}")
            a(f"s_mov_b64 exec, {sp(mEVEN)}")
            a(f"global_store_dword v{T+14}, v{T+13}, {sp(pOUT)}")
            a("s_mov_b64 exec, -1")
            self.stamp("out")
            a(f"{lz}:")
        a(f"{l}:")

    def build(self):
        a = self.a
        self.prologue()
        self.stamp("start")
        for it in range(2):
            if it == 1:
                a(f"s_add_u32 s{pIT}, s{pIT}, {IT_STRIDE}\ns_addc_u32 s{pIT+1}, s{pIT+1}, 0")
            self.q_phase(it)
            self.attention(it)
            self.o_phase(it)
            self.g_phase(it)
            self.d_phase(it)
        a("L_end:")
        a("s_endpgm")
        a("L_text_end:")
        hdr = ["; Persistent single-launch decode kernel: 256 workgroups (one per CU), 4 waves each.",
               "; Generated by gen/genk.py (hand-designed schedule).",
               f"; @launch grid=(256,1,1) block=(256,1,1) lds={LDS_SIZE}"]
        return kernel_file(NAME, a.text(), hdr, vgpr=512, sgpr=96, accum=256)

if __name__ == "__main__":
    import argparse
    ap = argparse.ArgumentParser()
    ap.add_argument("-o", default="interleave_layers__sliding_block_cached__glu_gated_glu__decode.s")
    ap.add_argument("--stamps", action="store_true")
    ap.add_argument("--set", action="append", default=[])
    args = ap.parse_args()
    c = Cfg(); c.stamps = args.stamps
    for kv in args.set:
        k, val = kv.split("="); setattr(c, k, int(val))
    g = Gen(c)
    txt = g.build()
    open(args.o, "w").write(txt)
    print("instructions:", g.a.count, "nops inserted:", g.a.nops, "stamps:", g.stamp_names)
```

```python
import sys, os
sys.path.insert(0, os.path.dirname(os.path.abspath(__file__)))
from asm2 import Asm, kernel_file

NAME = "interleave_layers__sliding_block_cached__glu_gated_glu__decode_kernel"

class Cfg:
    stamps = False
    spin_limit = 40000
    d_X = 6; d_H = 6; d_Y = 6
    d_O = 0; d_Q = 0; d_Z = 0
    kv_nt = True
    w_nt = False
    force_slow = False
    code_prefetch = True
    dbgtime = False

IT_STRIDE = 0x80000
R_Q  = 0
R_O  = 32*1024
R_OS = 288*1024
R_X  = 296*1024
R_H  = 328*1024
R_YZ = 344*1024
R_Q0 = 1024*1024
STAMP_OFF = 2*1024*1024
BUF_A = 0
BUF_B = 65536
E = 131072
PQ, PQC, PO, PG, PGC, PD, QB = E, E+1024, E+2048, E+3072, E+4096, E+5120, E+6144
STQ, STG, FL, SB = E+7168, E+7232, E+7296, E+7360
OB = E+8192
LDS_SIZE = E+16384

sG, sB, sS, sW, sLOC = 3, 4, 5, 6, 7
pX, pK, pV, pWQ, pWO, pGATE, pUP, pDOWN, pOUT, pDBG, pWS = 8, 10, 12, 14, 16, 20, 22, 24, 26, 28, 30
SRD = 32
sOFF, sCNT, sT0, sT1 = 36, 37, 38, 39
mA2, mD, mQ = 40, 42, 44
pIT, pR = 46, 48
mEVEN, mODD, mEV32 = 50, 52, 54
sSPIN, sGRP, sFS, sT2 = 56, 57, 58, 59
m0_32, mLOW4 = 60, 62
sC = 18
sT3, sT4 = 8, 9
sGA = 64
sSTAMP = 96
pST = 98
sEX = 100
def sp(r): return f"s[{r}:{r+1}]"

vL = 0
vXY, vO, vOS, vH, vQ = 1, 2, 3, 4, 5
vPQ, vPO, vPOS, vPX, vPH, vPY, vPZ = 6, 7, 8, 9, 10, 11, 12
vPW, vPR = 13, 14
vCQ, vCG, vRES = 15, 16, 17
vOD, vOC = 18, 19
vONE = 20
vSTW, vSBW, vSBR, vDW, vDR = 24, 25, 26, 27, 28
vES = 29
vT = 30
A0, A1 = 32, 36
vOSD = 40
T = 42
ACC = 64
GR, SX = 96, 100
ACC2 = 104
QF, SA, PP, OA, LA = 64, 80, 96, 104, 136
DT, GT = 160, 192
aK, aV, aWQ, aWO = 0, 64, 128, 192
def v(r, n=1): return f"v{r}" if n == 1 else f"v[{r}:{r+n-1}]"
def a_(r, n=1): return f"a{r}" if n == 1 else f"a[{r}:{r+n-1}]"
def Wq(ts, ct): return a_(aWQ + (ct*4+ts)*4, 4)
def Wo(ts, ct): return a_(aWO + (ct*4+ts)*4, 4)
def Wg(ts, ct): return v(GT + (ct*4+ts)*4, 4)
def Wd(ts, ct): return v(DT + (ct*2+ts)*4, 4)
DPP = "row_mask:0xf bank_mask:0xf"
MF = "v_mfma_f32_16x16x32_bf16"

class Gen:
    def __init__(self, cfg):
        self.c = cfg
        self.a = Asm()
        self.nstamp = 0
        self.stamp_names = []

    def stamp(self, name, reg=None):
        if not self.c.stamps: return
        a = self.a
        i = self.nstamp; self.nstamp += 1; self.stamp_names.append(name)
        if reg is None:
            a(f"s_memrealtime {sp(sSTAMP)}\ns_waitcnt lgkmcnt(0)")
        a(f"v_writelane_b32 v159, s{sSTAMP if reg is None else reg}, {i}")
    def stamp_flush(self):
        if not self.c.stamps: return
        a = self.a
        a(f"s_lshl_b32 s{sT0}, s2, 2\ns_add_u32 s{sT0}, s{sT0}, s{sW}\ns_lshl_b32 s{sT0}, s{sT0}, 8\ns_add_u32 s{sT0}, s{sT0}, {STAMP_OFF}")
        a(f"v_lshlrev_b32 v158, 2, v{vL}\nv_add_u32 v158, s{sT0}, v158\ns_mov_b64 exec, -1\nglobal_store_dword v158, v159, {sp(pWS)}")

    def region(self, off):
        if off >= 0:
            self.a(f"s_add_u32 s{pR}, s{pIT}, {off}\ns_addc_u32 s{pR+1}, s{pIT+1}, 0")
        else:
            self.a(f"s_sub_u32 s{pR}, s{pIT}, {-off}\ns_subb_u32 s{pR+1}, s{pIT+1}, 0")

    def srd(self, ptr, nbytes):
        self.a(f"s_mov_b32 s{SRD}, s{ptr}\ns_and_b32 s{SRD+1}, s{ptr+1}, 0xffff\ns_mov_b32 s{SRD+2}, {nbytes}\ns_mov_b32 s{SRD+3}, 0x20000")

    def dma_loop(self, n_iter, vregs, soff_step, nt):
        a = self.a
        fl = "nt " if nt else ""
        l = a.lbl("Ldma")
        a(f"s_mov_b32 s{sCNT}, {n_iter}")
        a(f"{l}:")
        for r in vregs:
            a(f"buffer_load_dwordx4 v{r}, s[{SRD}:{SRD+3}], s{sOFF} offen {fl}lds")
            a(f"s_add_u32 m0, m0, 1024\ns_add_u32 s{sOFF}, s{sOFF}, {soff_step}")
        a(f"s_sub_u32 s{sCNT}, s{sCNT}, 1\ns_cmp_lg_u32 s{sCNT}, 0\ns_cbranch_scc1 {l}")

    def poll(self, loads, regs, mask=None, delay=0):
        a = self.a
        if delay: a(f"s_sleep {delay}")
        if mask is not None: a(f"s_mov_b64 exec, {sp(mask)}")
        l = a.lbl("Lpoll"); d = a.lbl("Lgot")
        a(f"s_mov_b32 s{sSPIN}, 0")
        a(f"{l}:")
        for s in loads: a(s)
        a(f"s_add_u32 s{sSPIN}, s{sSPIN}, 1\ns_cmp_ge_u32 s{sSPIN}, {self.c.spin_limit}\ns_cbranch_scc1 {d}")
        a("s_waitcnt vmcnt(0)")
        cur, rest = regs[0], list(regs[1:])
        while rest:
            if len(rest) >= 2:
                a(f"v_max3_u32 v{T}, v{cur}, v{rest[0]}, v{rest[1]}"); rest = rest[2:]
            else:
                a(f"v_max_u32 v{T}, v{cur}, v{rest[0]}"); rest = rest[1:]
            cur = T
        a(f"v_cmp_eq_u32 vcc, -1, v{cur}")
        a(f"s_cbranch_vccnz {l}")
        a(f"{d}:")
        a("s_waitcnt vmcnt(0)")
        if mask is not None: a("s_mov_b64 exec, -1")

    def store_local(self, instr):
        a = self.a
        if self.c.force_slow:
            a(instr + " sc1"); return
        l1 = a.lbl("Lsl"); l2 = a.lbl("Lse")
        a(f"s_cmp_eq_u32 s{sLOC}, 0\ns_cbranch_scc1 {l1}")
        a(instr)
        a(f"s_branch {l2}")
        a(f"{l1}:")
        a(instr + " sc1")
        a(f"{l2}:")

    def only_wave(self, w):
        l = self.a.lbl("Lw")
        self.a(f"s_cmp_lg_u32 s{sW}, {w}\ns_cbranch_scc1 {l}")
        return l
    def only_loader(self):
        l = self.a.lbl("Lld")
        self.a(f"s_cmp_ge_u32 s{sW}, 2\ns_cbranch_scc1 {l}")
        return l

    def barrier(self):
        self.a("s_waitcnt lgkmcnt(0)\ns_barrier")

    def w_read_addrs(self, buf, wave_shift):
        a = self.a
        a(f"v_lshrrev_b32 v{T+4}, 4, v{vL}")
        a(f"v_bfe_u32 v{T+5}, v{vL}, 2, 2")
        a(f"v_lshl_add_u32 v{T+6}, v{T+4}, 3, v{T+5}")
        a(f"v_lshlrev_b32 v{T+6}, 7, v{T+6}")
        a(f"v_lshrrev_b32 v{T+7}, 1, v{T+5}")
        a(f"v_and_b32 v{T+4}, 1, v{T+4}")
        a(f"v_lshl_or_b32 v{T+7}, v{T+4}, 1, v{T+7}")
        a(f"v_lshlrev_b32 v{T+7}, 1, v{T+7}")
        a(f"v_bfe_u32 v{T+4}, v{vL}, 1, 1")
        a(f"v_xor_b32 v{T+7}, v{T+7}, v{T+4}")
        a(f"v_lshl_add_u32 v{T+6}, v{T+7}, 4, v{T+6}")
        a(f"v_and_b32 v{T+4}, 1, v{vL}")
        a(f"v_lshl_add_u32 v{T+6}, v{T+4}, 3, v{T+6}")
        a(f"s_lshl_b32 s{sT0}, s{sW}, {wave_shift}\ns_add_u32 s{sT0}, s{sT0}, {buf}")
        a(f"v_add_u32 v{T+6}, s{sT0}, v{T+6}")
        for ct in range(4):
            a(f"v_xor_b32 v{T+ct}, {32*ct}, v{T+6}")
    def w_reads(self, dest, nts, cts):
        a = self.a
        for ct in cts:
            for ts in range(nts):
                d = dest(ts, ct)
                pre = d[0]; base = int(d[2:d.index(":")])
                for h in range(2):
                    a(f"ds_read_b64_tr_b16 {pre}[{base+2*h}:{base+2*h+1}], v{T+ct} offset:{ts*4096+h*512}")

    def mf(self, d, A, B, c):
        self.a(f"{MF} {v(d,4)}, {A}, {B}, {c}")

    def gemv_mfmas(self, W, acc, A0r, A1r, cts=range(4)):
        out = []
        for ct in cts:
            d0 = acc + (ct*2)*4; d1 = d0 + 4
            out.append([f"{MF} {v(d0,4)}, {v(A0r,4)}, {W(0,ct)}, 0",
                        f"{MF} {v(d1,4)}, {v(A0r,4)}, {W(1,ct)}, 0",
                        f"{MF} {v(d0,4)}, {v(A1r,4)}, {W(2,ct)}, {v(d0,4)}",
                        f"{MF} {v(d1,4)}, {v(A1r,4)}, {W(3,ct)}, {v(d1,4)}"])
        return out
    def val_ops(self, acc, ct, dst, weighted=None):
        d0 = acc + (ct*2)*4; d1 = d0 + 4
        if weighted is None:
            return [f"v_add_f32 v{dst}, v{d0}, v{d0+2}", f"v_add_f32 v{d1+1}, v{d1+1}, v{d1+3}", f"v_add_f32 v{dst}, v{dst}, v{d1+1}"]
        wA, wB = weighted
        return [f"v_add_f32 v{d0}, v{d0}, v{d1+1}", f"v_add_f32 v{d0+2}, v{d0+2}, v{d1+3}",
                f"v_mul_f32 v{dst}, v{wA}, v{d0}", f"v_fmac_f32 v{dst}, v{wB}, v{d0+2}"]
    def row_reduce(self, val):
        a = self.a
        a(f"v_permlane32_swap_b32 v{val}, v{val+2}")
        a(f"v_permlane32_swap_b32 v{val+1}, v{val+3}")
        a(f"v_add_f32 v{val}, v{val}, v{val+2}")
        a(f"v_add_f32 v{val+1}, v{val+1}, v{val+3}")
        a(f"v_permlane16_swap_b32 v{val}, v{val+1}")
        a(f"v_add_f32 v{val}, v{val}, v{val+1}")
    def stats_mfmas(self):
        return [f"{MF} {v(GR,4)}, {v(A0,4)}, {v(A0,4)}, 0", f"{MF} {v(SX,4)}, {v(A0,4)}, {v(vONE,4)}, 0",
                f"{MF} {v(GR,4)}, {v(A1,4)}, {v(A1,4)}, {v(GR,4)}", f"{MF} {v(SX,4)}, {v(A1,4)}, {v(vONE,4)}, {v(SX,4)}"]
    def stats_ops(self):
        x2, x1, t = T+8, T+9, T+10
        return [f"v_add_f32 v{GR}, v{GR}, v{GR+2}", f"v_add_f32 v{GR+1}, v{GR+1}, v{GR+3}",
                f"v_add_f32 v{SX}, v{SX}, v{SX+1}", f"v_add_f32 v{SX+2}, v{SX+2}, v{SX+3}",
                f"v_cndmask_b32 v{x2}, v{GR}, v{GR+1}, {sp(mODD)}",
                f"v_add_f32 v{x1}, v{SX}, v{SX+2}",
                f"v_add_f32_dpp v{x2}, v{x2}, v{x2} row_ror:8 {DPP}",
                f"v_add_f32_dpp v{x2}, v{x2}, v{x2} row_ror:4 {DPP}",
                f"v_add_f32_dpp v{x2}, v{x2}, v{x2} row_ror:2 {DPP}",
                f"v_add_f32_dpp v{x2}, v{x2}, v{x2} row_ror:1 {DPP}",
                f"v_permlane32_swap_b32 v{x2}, v{x1}",
                f"v_add_f32 v{x2}, v{x2}, v{x1}",
                f"v_mov_b32 v{t}, v{x2}",
                f"v_permlane16_swap_b32 v{x2}, v{t}",
                f"v_add_f32 v{x2}, v{x2}, v{t}"]

    def gemv(self, W, parea, stats=None, weighted=None, pre_ops=(), A0r=A0, A1r=A1, acc=ACC):
        a = self.a
        val = T+12
        m = self.gemv_mfmas(W, acc, A0r, A1r)
        fill = list(pre_ops)
        if stats is not None:
            for s in self.stats_mfmas(): a(s)
        for s in m[0]: a(s)
        for s in m[1]: a(s)
        if stats is not None: fill += self.stats_ops()
        rest = m[2] + m[3]
        per = (len(fill) + len(rest) - 1) // len(rest) if fill else 0
        for s in rest:
            a(s)
            for _ in range(per):
                if fill: a(fill.pop(0))
        for s in fill: a(s)
        for ct in range(4):
            for s in self.val_ops(acc, ct, val+ct, weighted): a(s)
        self.row_reduce(val)
        a(f"ds_write_b32 v{vPW}, v{val} offset:{parea-E}")
        if stats is not None:
            a(f"s_mov_b64 exec, {sp(m0_32)}")
            a(f"ds_write_b32 v{vSTW}, v{T+8} offset:{stats-STQ}")
            a("s_mov_b64 exec, -1")

    def final_sum(self, parea, dst):
        a = self.a
        a(f"ds_read2st64_b32 {v(T,2)}, v{vPR} offset0:{(parea-E)//256} offset1:{(parea-E)//256+1}")
        a(f"ds_read2st64_b32 {v(T+2,2)}, v{vPR} offset0:{(parea-E)//256+2} offset1:{(parea-E)//256+3}")
    def final_sum2(self, dst):
        a = self.a
        a(f"v_add_f32 v{T}, v{T}, v{T+1}\nv_add_f32 v{T+2}, v{T+2}, v{T+3}\nv_add_f32 v{dst}, v{T}, v{T+2}")
    def ln_fix(self, st, z, cs):
        a = self.a
        a(f"ds_read_b128 {v(T+4,4)}, v{vES} offset:{st-E}")
        a(f"ds_read_b128 {v(T+8,4)}, v{vES} offset:{st-E+16}")
        a("s_waitcnt lgkmcnt(0)")
        self.final_sum2(z)
        a(f"v_add_f32 v{T+4}, v{T+4}, v{T+6}\nv_add_f32 v{T+5}, v{T+5}, v{T+7}")
        a(f"v_add_f32 v{T+8}, v{T+8}, v{T+10}\nv_add_f32 v{T+9}, v{T+9}, v{T+11}")
        a(f"v_add_f32 v{T+4}, v{T+4}, v{T+8}\nv_add_f32 v{T+5}, v{T+5}, v{T+9}")
        a(f"v_mul_f32 v{T+5}, 0x3b000000, v{T+5}")
        a(f"v_mul_f32 v{T+4}, 0x3b000000, v{T+4}")
        a(f"v_fma_f32 v{T+4}, -v{T+5}, v{T+5}, v{T+4}")
        a(f"v_max_f32 v{T+4}, 0, v{T+4}")
        a(f"v_add_f32 v{T+4}, 0x3727c5ac, v{T+4}")
        a(f"v_rsq_f32 v{T+4}, v{T+4}")
        a(f"v_fma_f32 v{z}, -v{T+5}, v{cs}, v{z}")
        a(f"v_mul_f32 v{z}, v{z}, v{T+4}")
    def pack_pairs(self, z, dst):
        a = self.a
        a(f"v_mov_b32_dpp v{T+1}, v{z} quad_perm:[1,1,3,3] {DPP}")
        a(f"v_cvt_pk_bf16_f32 v{dst}, v{z}, v{T+1}")
    def sum8_resid(self, off_region, voff_expr_reg):
        a = self.a
        self.region(off_region)
        for p in range(8):
            pass
        a(f"v_add_u32 v{T+8}, 4096, v{voff_expr_reg}")
        for p in range(8):
            base = voff_expr_reg if p < 4 else T+8
            a(f"global_load_ushort v{T+p}, v{base}, {sp(pR)} offset:{(p%4)*1024} sc1")
        a("s_waitcnt vmcnt(0)")
        for p in range(8): a(f"v_lshlrev_b32 v{T+p}, 16, v{T+p}")
        a(f"v_add_f32 v{T}, v{T}, v{T+1}\nv_add_f32 v{T+2}, v{T+2}, v{T+3}\nv_add_f32 v{T+4}, v{T+4}, v{T+5}\nv_add_f32 v{T+6}, v{T+6}, v{T+7}")
        a(f"v_add_f32 v{T}, v{T}, v{T+2}\nv_add_f32 v{T+4}, v{T+4}, v{T+6}\nv_add_f32 v{vRES}, v{T}, v{T+4}")

    def prologue(self):
        a = self.a; c = self.c
        a(f"s_cmp_ge_u32 s2, 256\ns_cbranch_scc1 L_end")
        if c.stamps: a("s_memrealtime s[94:95]\nv_mov_b32 v159, 0")
        if c.dbgtime: a("s_memrealtime s[100:101]")
        a(f"s_load_dwordx16 s[8:23], s[0:1], 0\ns_load_dwordx8 s[24:31], s[0:1], 64")
        a(f"v_lshrrev_b32 v{vT}, 6, v0\nv_and_b32 v{vL}, 63, v0")
        a(f"s_and_b32 s{sG}, s2, 7\ns_lshr_b32 s{sT0}, s2, 3\ns_lshr_b32 s{sB}, s{sT0}, 3\ns_and_b32 s{sS}, s{sT0}, 7")
        a(f"v_readfirstlane_b32 s{sW}, v{vT}")
        a(f"s_lshl_b32 s{sGRP}, s{sG}, 2\ns_add_u32 s{sGRP}, s{sGRP}, s{sB}")
        for r in range(8): a(f"v_mov_b32 v{A0+r}, 0")
        a(f"s_mov_b32 s{mA2}, 0x00030003\ns_mov_b32 s{mA2+1}, 0x00030003")
        a(f"v_lshrrev_b32 v{T+5}, 4, v{vL}\nv_and_b32 v{T+6}, 15, v{vL}")
        a(f"v_and_b32 v{T+12}, 1, v{vL}\nv_lshlrev_b32 v{T+12}, 2, v{T+12}\nv_add_u32 v{T+12}, v{T+12}, v{T+5}\nv_lshlrev_b32 v{T+12}, 4, v{T+12}")
        a(f"s_lshl_b32 s{sT0}, s{sB}, 10\ns_lshl_b32 s{sT1}, s{sW}, 8\ns_add_u32 s{sT1}, s{sT0}, s{sT1}")
        a(f"v_add_u32 v{T+12}, s{sT1}, v{T+12}")
        a("s_waitcnt lgkmcnt(0)")
        a(f"s_mov_b64 exec, {sp(mA2)}")
        a(f"global_load_dwordx4 {v(A0,4)}, v{T+12}, {sp(pX)}")
        a(f"global_load_dwordx4 {v(A1,4)}, v{T+12}, {sp(pX)} offset:128")
        a("s_mov_b64 exec, -1")
        l = self.only_wave(3)
        a(f"s_lshl_b32 s{sT1}, s{sS}, 7\ns_add_u32 s{sT0}, s{sT0}, s{sT1}\nv_lshlrev_b32 v{T+13}, 1, v{vL}\nv_add_u32 v{T+13}, s{sT0}, v{T+13}")
        a(f"global_load_ushort v{vRES}, v{T+13}, {sp(pX)}")
        a(f"s_lshl_b32 s{sT0}, s2, 12\nv_lshlrev_b32 v{T+13}, 4, v{vL}\nv_add_u32 v{T+13}, s{sT0}, v{T+13}")
        for r in range(4): a(f"v_mov_b32 v{T+14+r}, -1")
        for i in range(4): a(f"global_store_dwordx4 v{T+13}, {v(T+14,4)}, {sp(pWS)} offset:{i*1024} sc1")
        self.pq_addr(T+18, T+19)
        a(f"s_add_u32 s{pR}, s{pWS}, {R_Q0}\ns_addc_u32 s{pR+1}, s{pWS+1}, 0")
        a(f"s_mov_b32 s{mEVEN}, 0x55555555\ns_mov_b32 s{mEVEN+1}, 0x55555555\ns_mov_b64 exec, {sp(mEVEN)}")
        a(f"global_store_dword v{vPQ}, v{T+14}, {sp(pR)} sc1")
        a("s_mov_b64 exec, -1")
        a(f"{l}:")
        if c.code_prefetch:
            l = self.only_wave(2)
            a(f"s_getpc_b64 {sp(pR)}")
            a("L_pc:")
            a(f"s_sub_u32 s{pR}, s{pR}, L_pc-{NAME}\ns_subb_u32 s{pR+1}, s{pR+1}, 0")
            a(f"s_lshr_b32 s{sT0}, s2, 3\ns_lshl_b32 s{sT0}, s{sT0}, 11\nv_lshlrev_b32 v{T+13}, 4, v{vL}\nv_add_u32 v{T+13}, s{sT0}, v{T+13}")
            a(f"s_mov_b32 s{sT1}, L_text_end-{NAME}-1024-16")
            a(f"v_min_u32 v{T+13}, s{sT1}, v{T+13}")
            a(f"global_load_dwordx4 {v(T+14,4)}, v{T+13}, {sp(pR)}\nglobal_load_dwordx4 {v(T+18,4)}, v{T+13}, {sp(pR)} offset:1024")
            a(f"{l}:")
        self.pat_w(13)
        a("s_barrier")
        l = self.only_loader()
        self.srd(pWQ, 4194304)
        a(f"s_lshl_b32 s{sOFF}, s{sG}, 10\ns_lshl_b32 s{sT0}, s{sS}, 7\ns_add_u32 s{sOFF}, s{sOFF}, s{sT0}")
        a(f"s_lshl_b32 s{sT0}, s{sW}, 21\ns_add_u32 s{sOFF}, s{sOFF}, s{sT0}")
        a(f"s_lshl_b32 s{sT0}, s{sW}, 15\ns_add_u32 m0, s{sT0}, {BUF_A}")
        self.dma_loop(16, [T+3, T+4], 65536, c.w_nt)
        self.dma_k(0)
        a(f"{l}:")
        l = self.only_wave(3)
        a(f"s_getreg_b32 s{sGA}, hwreg(HW_REG_XCC_ID, 0, 4)")
        a(f"s_mul_i32 s{sGA+1}, s{sGA}, s{sGA}\ns_lshl_b32 s{sGA+1}, s{sGA+1}, 17\ns_lshl_b32 s{sT0}, s{sGA}, 8\ns_or_b32 s{sGA+1}, s{sGA+1}, s{sT0}\ns_or_b32 s{sGA+1}, s{sGA+1}, 1")
        a(f"s_and_b32 s{sT0}, s{sG}, 3\ns_lshl_b32 s{sT0}, s{sT0}, 4\ns_lshr_b32 s{sT1}, s{sG}, 2\ns_lshl_b32 s{sT1}, s{sT1}, 7\ns_add_u32 s{sT0}, s{sT0}, s{sT1}")
        a(f"v_mov_b32 v{T+18}, s{sT0}\nv_mov_b32 v{T+19}, s{sGA+1}")
        a("s_waitcnt vmcnt(0)\ns_mov_b64 exec, 1")
        a(f"global_atomic_add v{T+18}, v{T+19}, {sp(pDBG)} sc1")
        a("s_mov_b64 exec, -1")
        a(f"v_lshlrev_b32 v{vRES}, 16, v{vRES}")
        a(f"{l}:")
        self.setup()

    def pq_addr(self, t0, t1):
        a = self.a
        a(f"s_and_b32 s{sT1}, s{sS}, 1\ns_lshl_b32 s{sT1}, s{sT1}, 6\nv_add_u32 v{t0}, s{sT1}, v{vL}")
        a(f"v_lshrrev_b32 v{t1}, 5, v{t0}\nv_lshlrev_b32 v{t1}, 8, v{t1}")
        a(f"v_bfe_u32 v{vPQ}, v{t0}, 3, 2\nv_lshl_add_u32 v{t1}, v{vPQ}, 6, v{t1}")
        a(f"v_and_b32 v{t0}, 7, v{t0}\nv_lshl_add_u32 v{t1}, v{t0}, 1, v{t1}")
        a(f"s_lshl_b32 s{sT0}, s{sGRP}, 10\ns_lshr_b32 s{sT1}, s{sS}, 1\ns_lshl_b32 s{sT1}, s{sT1}, 4\ns_add_u32 s{sT0}, s{sT0}, s{sT1}\nv_add_u32 v{vPQ}, s{sT0}, v{t1}")

    def pat_w(self, shift):
        a = self.a
        a(f"v_lshrrev_b32 v{T}, 3, v{vL}\nv_and_b32 v{T+1}, 7, v{vL}\nv_bfe_u32 v{T+2}, v{vL}, 4, 1\nv_lshlrev_b32 v{T+2}, 1, v{T+2}\nv_xor_b32 v{T+1}, v{T+1}, v{T+2}")
        a(f"v_lshlrev_b32 v{T+1}, 4, v{T+1}\nv_lshl_add_u32 v{T+3}, v{T}, {shift}, v{T+1}\nv_xor_b32 v{T+4}, 64, v{T+3}")
    def dma_k(self, part):
        a = self.a
        a(f"v_lshrrev_b32 v{T+5}, 4, v{vL}\nv_and_b32 v{T+6}, 15, v{vL}\nv_xor_b32 v{T+7}, v{T+6}, v{T+5}\nv_lshlrev_b32 v{T+7}, 4, v{T+7}")
        a(f"v_lshl_add_u32 v{T+8}, v{T+5}, 8, v{T+7}")
        a(f"v_xor_b32 v{T+9}, 64, v{T+8}\nv_xor_b32 v{T+10}, 128, v{T+8}\nv_xor_b32 v{T+11}, 192, v{T+8}")
        self.srd(pK, 67108864)
        self.kv_base()
        a(f"s_lshl_b32 s{sT0}, s{sW}, 15\ns_add_u32 s{sT0}, s{sT0}, {part*16384}\ns_add_u32 s{sOFF}, s{sT2}, s{sT0}\ns_add_u32 m0, s{sT0}, {BUF_B}")
        self.dma_loop(4, [T+8, T+9, T+10, T+11], 1024, self.c.kv_nt)
    def dma_v(self, u):
        a = self.a
        self.srd(pV, 67108864)
        self.kv_base()
        a(f"v_lshrrev_b32 v{T+5}, 4, v{vL}\nv_and_b32 v{T+6}, 15, v{vL}\nv_lshlrev_b32 v{T+7}, 1, v{T+5}\nv_xor_b32 v{T+7}, v{T+6}, v{T+7}")
        a(f"v_lshlrev_b32 v{T+7}, 4, v{T+7}\nv_lshl_add_u32 v{T+8}, v{T+5}, 8, v{T+7}\nv_xor_b32 v{T+9}, 128, v{T+8}")
        for wl in range(2):
            a(f"s_lshl_b32 s{sT0}, s{sW}, 15\ns_add_u32 s{sT0}, s{sT0}, {(16*wl+8*u)*1024}")
            a(f"s_add_u32 s{sOFF}, s{sT2}, s{sT0}\ns_add_u32 m0, s{sT0}, {BUF_A}")
            self.dma_loop(4, [T+8, T+9], 1024, self.c.kv_nt)
    def dma_wo(self, part):
        a = self.a
        self.srd(pWO, 4194304)
        self.pat_w(10)
        a(f"s_lshl_b32 s{sOFF}, s{sG}, 19\ns_lshl_b32 s{sT0}, s{sS}, 7\ns_add_u32 s{sOFF}, s{sOFF}, s{sT0}\ns_lshl_b32 s{sT0}, s{sW}, 18\ns_add_u32 s{sOFF}, s{sOFF}, s{sT0}")
        a(f"s_add_u32 s{sOFF}, s{sOFF}, {part*16*8192}")
        a(f"s_lshl_b32 s{sT0}, s{sW}, 15\ns_add_u32 s{sT0}, s{sT0}, {BUF_B+part*16384}\ns_mov_b32 m0, s{sT0}")
        self.dma_loop(8, [T+3, T+4], 8192, self.c.w_nt)

    def kv_base(self):
        a = self.a
        a(f"s_lshl_b32 s{sT2}, s{sB}, 24\ns_lshl_b32 s{sT0}, s{sG}, 21\ns_add_u32 s{sT2}, s{sT2}, s{sT0}")
        a(f"s_lshl_b32 s{sT0}, s{sS}, 16\ns_add_u32 s{sT2}, s{sT2}, s{sT0}\ns_add_u32 s{sT2}, s{sT2}, {6144*256}")

    def setup(self):
        a = self.a
        def m(reg, val):
            a(f"s_mov_b32 s{reg}, 0x{val & 0xffffffff:08x}\ns_mov_b32 s{reg+1}, 0x{val >> 32:08x}")
        m(mD, 0x0001000300030003); m(mQ, 0x000F000F000F000F); m(mEVEN, 0x5555555555555555); m(mODD, 0xAAAAAAAAAAAAAAAA)
        m(mEV32, 0x0000000055555555); m(m0_32, 0x0000000100000001); m(mLOW4, 0xF)
        a(f"s_mov_b32 s{sC}, 0x3e0293ee")
        a(f"s_mul_i32 s{sFS}, s{sG}, 7\ns_add_u32 s{sFS}, s{sFS}, s{sS}")
        a(f"s_mov_b32 s{pIT}, s{pWS}\ns_mov_b32 s{pIT+1}, s{pWS+1}")
        n, j, p, tp, t0, t1 = T+22, T+23, T+24, T+25, T+26, T+27
        n, j, p, tp, t0, t1 = 64, 65, 66, 67, 68, 69
        a(f"v_and_b32 v{n}, 15, v{vL}\nv_lshrrev_b32 v{j}, 4, v{vL}\nv_bfe_u32 v{p}, v{vL}, 1, 3\nv_and_b32 v{tp}, 1, v{vL}")
        for r in range(4): a(f"v_mov_b32 v{vONE+r}, 0x3f803f80")
        a(f"v_lshl_add_u32 v{t0}, v{tp}, 2, v{j}\nv_lshlrev_b32 v{t0}, 4, v{t0}\nv_lshl_add_u32 v{t0}, v{p}, 10, v{t0}")
        a(f"s_lshl_b32 s{sT0}, s{sB}, 13\ns_lshl_b32 s{sT1}, s{sW}, 8\ns_add_u32 s{sT0}, s{sT0}, s{sT1}\nv_add_u32 v{vXY}, s{sT0}, v{t0}")
        a(f"s_lshl_b32 s{sT0}, s{sGRP}, 13\ns_add_u32 s{sT0}, s{sT0}, s{sT1}\nv_add_u32 v{vO}, s{sT0}, v{t0}")
        a(f"v_lshl_add_u32 v{t0}, v{j}, 1, v{n}\nv_and_b32 v{t0}, 7, v{t0}\nv_lshlrev_b32 v{t0}, 3, v{t0}")
        a(f"s_lshl_b32 s{sT0}, s{sGRP}, 8\ns_lshl_b32 s{sT1}, s{sW}, 6\ns_add_u32 s{sT0}, s{sT0}, s{sT1}\nv_add_u32 v{vOS}, s{sT0}, v{t0}")
        a(f"s_lshl_b32 s{sT1}, s{sS}, 3\ns_add_u32 s{sT0}, s{sT0}, s{sT1}\nv_mov_b32 v{vPOS}, s{sT0}")
        a(f"v_lshl_add_u32 v{t0}, v{n}, 2, v{j}\nv_lshlrev_b32 v{t0}, 4, v{t0}")
        a(f"s_mul_i32 s{sT0}, s{sS}, 28\ns_mul_i32 s{sT1}, s{sW}, 7\ns_add_u32 s{sT0}, s{sT0}, s{sT1}\ns_lshl_b32 s{sT0}, s{sT0}, 4")
        a(f"s_lshl_b32 s{sT1}, s{sB}, 12\ns_add_u32 s{sT0}, s{sT0}, s{sT1}\nv_add_u32 v{vH}, s{sT0}, v{t0}")
        a(f"v_lshlrev_b32 v{t0}, 4, v{n}\nv_lshl_add_u32 v{t0}, v{j}, 6, v{t0}\ns_lshl_b32 s{sT0}, s{sGRP}, 10\nv_add_u32 v{vQ}, s{sT0}, v{t0}")
        self.pq_addr(t0, t1)
        a(f"s_lshl_b32 s{sT0}, s{sGRP}, 13\ns_lshl_b32 s{sT1}, s{sS}, 10\ns_add_u32 s{sT0}, s{sT0}, s{sT1}\ns_lshl_b32 s{sT1}, s{sW}, 8\ns_add_u32 s{sT0}, s{sT0}, s{sT1}")
        a(f"v_lshlrev_b32 v{t0}, 2, v{vL}\nv_add_u32 v{vPO}, s{sT0}, v{t0}")
        a(f"s_lshl_b32 s{sT0}, s{sGRP}, 11\ns_lshl_b32 s{sT1}, s{sS}, 8\ns_add_u32 s{sT0}, s{sT0}, s{sT1}\nv_add_u32 v{vPZ}, s{sT0}, v{t0}")
        a(f"s_lshl_b32 s{sT0}, s{sW}, 8\ns_add_u32 s{sT0}, s{sT0}, {E}\nv_add_u32 v{vPW}, s{sT0}, v{t0}\nv_add_u32 v{vPR}, {E}, v{t0}")
        a(f"v_mov_b32 v{vES}, {E}")
        a(f"v_lshlrev_b32 v{t1}, 1, v{vL}")
        a(f"s_lshl_b32 s{sT0}, s{sB}, 13\ns_lshl_b32 s{sT1}, s{sG}, 10\ns_add_u32 s{sT0}, s{sT0}, s{sT1}\ns_lshl_b32 s{sT1}, s{sS}, 7\ns_add_u32 s{sT0}, s{sT0}, s{sT1}\nv_add_u32 v{vPX}, s{sT0}, v{t1}")
        a(f"s_lshl_b32 s{sT0}, s{sB}, 13\ns_lshl_b32 s{sT1}, s{sS}, 10\ns_add_u32 s{sT0}, s{sT0}, s{sT1}\ns_lshl_b32 s{sT1}, s{sG}, 7\ns_add_u32 s{sT0}, s{sT0}, s{sT1}\nv_add_u32 v{vPY}, s{sT0}, v{t1}")
        a(f"s_lshl_b32 s{sT0}, s{sB}, 12\ns_lshl_b32 s{sT1}, s{sFS}, 6\ns_add_u32 s{sT0}, s{sT0}, s{sT1}\nv_add_u32 v{vPH}, s{sT0}, v{t1}")
        a(f"s_lshl_b32 s{sT0}, s{sW}, 11\ns_add_u32 s{sT0}, s{sT0}, {OB}\nv_and_b32 v{t1}, 3, v{n}\nv_lshlrev_b32 v{t1}, 9, v{t1}\nv_lshl_add_u32 v{t1}, v{j}, 4, v{t1}\nv_add_u32 v{vOD}, s{sT0}, v{t1}")
        a(f"s_lshl_b32 s{sT0}, s{sW}, 9\ns_add_u32 s{sT0}, s{sT0}, {OB}\nv_lshlrev_b32 v{t1}, 3, v{vL}\nv_add_u32 v{vOC}, s{sT0}, v{t1}")
        a(f"s_lshl_b32 s{sT0}, s{sW}, 3\ns_add_u32 s{sT1}, s{sT0}, {SB}\nv_and_b32 v{t1}, 3, v{n}\nv_lshlrev_b32 v{t1}, 5, v{t1}\nv_add_u32 v{vSBW}, s{sT1}, v{t1}")
        a(f"s_add_u32 s{sT1}, s{sT0}, {STQ}\nv_lshrrev_b32 v{t1}, 5, v{vL}\nv_lshlrev_b32 v{t1}, 2, v{t1}\nv_add_u32 v{vSTW}, s{sT1}, v{t1}")
        a(f"s_lshl_b32 s{sT0}, s{sW}, 5\ns_add_u32 s{sT0}, s{sT0}, {SB}\nv_mov_b32 v{vSBR}, s{sT0}")
        a(f"s_lshl_b32 s{sT0}, s{sW}, 8\ns_add_u32 s{sT0}, s{sT0}, {PD}\nv_lshlrev_b32 v{t1}, 4, v{n}\nv_add_u32 v{vDW}, s{sT0}, v{t1}")
        a(f"v_lshl_add_u32 v{t1}, v{j}, 2, v{t1}\nv_add_u32 v{vDR}, {PD}, v{t1}")

    def q_phase(self, it):
        a = self.a; c = self.c
        if it == 0:
            l = self.only_loader(); a("s_waitcnt vmcnt(16)"); a(f"{l}:")
            l = a.lbl("Lnl"); a(f"s_cmp_lt_u32 s{sW}, 2\ns_cbranch_scc1 {l}\ns_waitcnt vmcnt(0)"); a(f"{l}:")
            a("s_barrier")
            self.stamp("wq landed")
            self.w_read_addrs(BUF_A, 14)
            self.w_reads(Wq, 4, range(4))
            self.barrier()
            o0 = ACC2+32
            for r in range(4): a(f"v_mov_b32 v{o0+r}, 0")
            a(f"s_mov_b64 exec, {sp(mA2)}")
            for r in range(4): a(f"v_mov_b32 v{o0+r}, 0x3f803f80")
            a("s_mov_b64 exec, -1")
            self.gemv(Wq, PQC, A0r=o0, A1r=o0)
        else:
            self.region(R_YZ - IT_STRIDE)
            self.poll([f"global_load_dwordx4 {v(A0,4)}, v{vXY}, {sp(pR)} sc1", f"global_load_dwordx4 {v(A1,4)}, v{vXY}, {sp(pR)} offset:128 sc1"],
                      list(range(A0, A0+8)), delay=c.d_Y)
            self.stamp("Y got")
        self.gemv(Wq, PQ, stats=STQ)
        self.barrier()
        if it == 0:
            l = self.only_loader(); self.dma_k(1); self.dma_v(0); a(f"{l}:")
        l = self.only_wave(3)
        if it == 0:
            self.final_sum(PQC, vCQ); a("s_waitcnt lgkmcnt(0)"); self.final_sum2(vCQ)
        self.final_sum(PQ, T+12)
        self.ln_fix(STQ, T+12, vCQ)
        self.pack_pairs(T+12, T+13)
        if it == 0:
            a(f"s_add_u32 s{pR}, s{pWS}, {R_Q0}\ns_addc_u32 s{pR+1}, s{pWS+1}, 0")
            a(f"s_mov_b64 exec, {sp(mEVEN)}")
            a(f"global_store_dword v{vPQ}, v{T+13}, {sp(pR)} sc1")
        else:
            self.region(R_Q)
            a(f"s_mov_b64 exec, {sp(mEVEN)}")
            self.store_local(f"global_store_dword v{vPQ}, v{T+13}, {sp(pR)}")
        a("s_mov_b64 exec, -1")
        self.stamp("Q pub")
        if it == 1:
            lg = a.lbl("Lrg"); a(f"s_cmp_lg_u32 s{sG}, 0\ns_cbranch_scc1 {lg}")
            a(f"s_lshl_b32 s{sT0}, s{sB}, 13\ns_lshl_b32 s{sT1}, s{sS}, 7\ns_add_u32 s{sT0}, s{sT0}, s{sT1}\nv_lshlrev_b32 v{T+20}, 1, v{vL}\nv_add_u32 v{T+20}, s{sT0}, v{T+20}")
            self.sum8_resid(R_YZ - IT_STRIDE, T+20)
            a(f"{lg}:")
        a(f"{l}:")

    def scalar_flags(self):
        a = self.a; c = self.c
        lp = a.lbl("Lfl"); ld = a.lbl("Lfd")
        G = sGA
        def chk():
            a("s_waitcnt lgkmcnt(0)")
            a(f"s_and_b32 s{sT0}, s{G}, 0xff")
            for k in range(1, 8): a(f"s_and_b32 s{sT1}, s{G+4*k}, 0xff\ns_add_u32 s{sT0}, s{sT0}, s{sT1}")
            a(f"s_cmp_eq_u32 s{sT0}, 256")
        a(f"s_load_dwordx16 s[{G}:{G+15}], {sp(pDBG)}, 0\ns_load_dwordx16 s[{G+16}:{G+31}], {sp(pDBG)}, 128")
        chk()
        a(f"s_cbranch_scc1 {ld}\ns_mov_b32 s{sSPIN}, 0")
        a(f"{lp}:")
        a("s_sleep 16")
        a(f"s_load_dwordx16 s[{G}:{G+15}], {sp(pDBG)}, 0 glc\ns_load_dwordx16 s[{G+16}:{G+31}], {sp(pDBG)}, 128 glc")
        chk()
        a(f"s_cbranch_scc1 {ld}\ns_add_u32 s{sSPIN}, s{sSPIN}, 1\ns_cmp_lt_u32 s{sSPIN}, {c.spin_limit//8}\ns_cbranch_scc1 {lp}")
        a(f"{ld}:")
        a(f"s_mov_b32 s{sT1}, s{G}")
        for k in range(1, 8): a(f"s_cmp_eq_u32 s{sG}, {k}\ns_cselect_b32 s{sT1}, s{G+4*k}, s{sT1}")
        a(f"s_bfe_u32 s{sT0}, s{sT1}, 0x90008\ns_lshr_b32 s{sT1}, s{sT1}, 17")
        a(f"s_mul_i32 s{sT0}, s{sT0}, s{sT0}\ns_lshl_b32 s{sT1}, s{sT1}, 5\ns_cmp_eq_u32 s{sT0}, s{sT1}\ns_cselect_b32 s{sLOC}, 1, 0")

    def scalar_q_gather(self):
        a = self.a; c = self.c
        G = sGA
        a(f"s_lshl_b32 s{sT0}, s{sGRP}, 10\ns_lshl_b32 s{sT1}, s{sW}, 8\ns_add_u32 s{sT0}, s{sT0}, s{sT1}\ns_add_u32 s{sT0}, s{sT0}, {R_Q0}")
        a(f"s_add_u32 s{pR}, s{pWS}, s{sT0}\ns_addc_u32 s{pR+1}, s{pWS+1}, 0")
        def rounds(fl):
            for h in range(2):
                a(f"s_load_dwordx16 s[{G}:{G+15}], {sp(pR)}, {128*h}{fl}\ns_load_dwordx16 s[{G+16}:{G+31}], {sp(pR)}, {128*h+64}{fl}")
                a("s_waitcnt lgkmcnt(0)")
                for i in range(32): a(f"v_writelane_b32 v{T}, s{G+i}, {32*h+i}")
            a(f"v_cmp_eq_u32 vcc, -1, v{T}")
        lp = a.lbl("Lqg"); ld = a.lbl("Lqd")
        rounds("")
        a(f"s_cbranch_vccz {ld}\ns_mov_b32 s{sSPIN}, 0")
        a(f"{lp}:")
        rounds(" glc")
        a(f"s_cbranch_vccz {ld}\ns_add_u32 s{sSPIN}, s{sSPIN}, 1\ns_cmp_lt_u32 s{sSPIN}, {c.spin_limit//4}\ns_cbranch_scc1 {lp}")
        a(f"{ld}:")
        a(f"s_lshl_b32 s{sT0}, s{sW}, 8\ns_add_u32 s{sT0}, s{sT0}, {QB}\nv_lshlrev_b32 v{T+1}, 2, v{vL}\nv_add_u32 v{T+1}, s{sT0}, v{T+1}")
        a(f"ds_write_b32 v{T+1}, v{T}")

    def attention(self, it):
        a = self.a; c = self.c
        if it == 0:
            l = self.only_loader(); a("s_waitcnt vmcnt(16)"); a(f"{l}:")
            a("s_barrier")
            self.stamp("K landed")
            self.scalar_flags()
            self.scalar_q_gather()
            self.barrier()
            self.stamp("q in LDS")
            a(f"v_and_b32 v{T}, 15, v{vL}\nv_lshrrev_b32 v{T+1}, 4, v{vL}\nv_xor_b32 v{T+2}, v{T}, v{T+1}\nv_lshlrev_b32 v{T+2}, 4, v{T+2}\nv_lshl_add_u32 v{T+2}, v{T}, 8, v{T+2}")
            a(f"s_lshl_b32 s{sT0}, s{sW}, 14\ns_add_u32 s{sT0}, s{sT0}, {BUF_B}\nv_add_u32 v{T+2}, s{sT0}, v{T+2}")
            for i in range(4): a(f"v_xor_b32 v{T+4+i}, {64*i}, v{T+2}")
            a(f"v_and_b32 v{T}, 3, v{T}\nv_lshl_add_u32 v{T}, v{T+1}, 2, v{T}\nv_lshlrev_b32 v{T}, 4, v{T}\nv_add_u32 v{T}, {QB}, v{T}")
            for i in range(4): a(f"ds_read_b128 {v(QF+4*i,4)}, v{T} offset:{256*i}")
            for Tt in range(4):
                for i in range(4): a(f"ds_read_b128 {a_(aK+16*Tt+4*i,4)}, v{T+4+i} offset:{Tt*4096}")
            self.barrier()
        else:
            self.region(R_Q)
            self.poll([f"global_load_dwordx4 {v(QF+4*i,4)}, v{vQ}, {sp(pR)} offset:{256*i} sc1" for i in range(4)],
                      list(range(QF, QF+16)), mask=mQ, delay=c.d_Q)
            self.stamp("Q got")
        for Tt in range(4):
            for i in range(4):
                a(f"{MF} {v(SA+4*Tt,4)}, {a_(aK+16*Tt+4*i,4)}, {v(QF+4*i,4)}, {'0' if i==0 else v(SA+4*Tt,4)}")
        mx, t = T, T+1
        a(f"v_max3_f32 v{mx}, v{SA}, v{SA+1}, v{SA+2}")
        r = SA+3
        while r < SA+16:
            if r+1 < SA+16: a(f"v_max3_f32 v{mx}, v{mx}, v{r}, v{r+1}"); r += 2
            else: a(f"v_max_f32 v{mx}, v{mx}, v{r}"); r += 1
        a(f"v_mov_b32 v{t}, v{mx}\nv_permlane32_swap_b32 v{mx}, v{t}\nv_max_f32 v{mx}, v{mx}, v{t}")
        a(f"v_mov_b32 v{t}, v{mx}\nv_permlane16_swap_b32 v{mx}, v{t}\nv_max_f32 v{mx}, v{mx}, v{t}")
        mc = T+20
        a(f"v_mul_f32 v{mc}, s{sC}, v{mx}")
        def pexp(u):
            for Tt in (2*u, 2*u+1):
                for r in range(4): a(f"v_fma_f32 v{SA+4*Tt+r}, v{SA+4*Tt+r}, s{sC}, -v{mc}")
                for r in range(4): a(f"v_exp_f32 v{SA+4*Tt+r}, v{SA+4*Tt+r}")
                h = (Tt & 1)*2
                a(f"v_cvt_pk_bf16_f32 v{PP+4*u+h}, v{SA+4*Tt}, v{SA+4*Tt+1}\nv_cvt_pk_bf16_f32 v{PP+4*u+h+1}, v{SA+4*Tt+2}, v{SA+4*Tt+3}")
        pexp(0); pexp(1)
        def vread(u):
            b = T+4
            a(f"v_lshrrev_b32 v{b}, 4, v{vL}\nv_bfe_u32 v{b+1}, v{vL}, 2, 2\nv_lshl_add_u32 v{b}, v{b}, 2, v{b+1}")
            a(f"v_and_b32 v{b+1}, 7, v{b}\nv_lshlrev_b32 v{b+1}, 1, v{b+1}\nv_bfe_u32 v{b+2}, v{vL}, 1, 1\nv_xor_b32 v{b+1}, v{b+1}, v{b+2}")
            a(f"v_lshlrev_b32 v{b+1}, 4, v{b+1}\nv_lshl_add_u32 v{b}, v{b}, 8, v{b+1}\nv_and_b32 v{b+1}, 1, v{vL}\nv_lshl_add_u32 v{b}, v{b+1}, 3, v{b}")
            a(f"s_lshl_b32 s{sT0}, s{sW}, 14\ns_add_u32 s{sT0}, s{sT0}, {BUF_A}\nv_add_u32 v{b}, s{sT0}, v{b}")
            for ct in range(8): a(f"v_xor_b32 v{b+1+ct}, {32*ct}, v{b}")
            for ct in range(8):
                for h in range(2):
                    d = aV+32*u+4*ct+2*h
                    a(f"ds_read_b64_tr_b16 a[{d}:{d+1}], v{b+1+ct} offset:{u*8192+h*4096}")
            a("s_waitcnt lgkmcnt(0)")
        for u in range(2):
            if it == 0:
                l = self.only_loader()
                if u == 0: self.dma_v(1)
                else: self.dma_wo(0)
                a("s_waitcnt vmcnt(16)"); a(f"{l}:")
                a("s_barrier")
                self.stamp(f"V{u} landed")
                vread(u)
            for ct in range(8):
                a(f"{MF} {v(OA+4*ct,4)}, {a_(aV+32*u+4*ct,4)}, {v(PP+4*u,4)}, {'0' if u==0 else v(OA+4*ct,4)}")
            a(f"{MF} {v(LA,4)}, {v(vONE,4)}, {v(PP+4*u,4)}, {'0' if u==0 else v(LA,4)}")
        a(f"s_mov_b64 exec, {sp(mQ)}")
        for ct in range(8): a(f"ds_write_b128 v{vOD}, {v(OA+4*ct,4)} offset:{64*ct}")
        a(f"s_mov_b64 exec, {sp(mLOW4)}")
        a(f"v_mov_b32 v{mc+1}, v{LA}")
        a(f"ds_write_b64 v{vSBW}, {v(mc,2)}")
        a("s_mov_b64 exec, -1")
        self.barrier()
        a(f"ds_read_b128 {v(T+4,4)}, v{vSBR}\nds_read_b128 {v(T+8,4)}, v{vSBR} offset:16")
        for ws in range(4): a(f"ds_read_b64 {v(T+12+2*ws,2)}, v{vOC} offset:{2048*ws}")
        a("s_waitcnt lgkmcnt(4)")
        M = T
        a(f"v_max3_f32 v{M}, v{T+4}, v{T+6}, v{T+8}\nv_max_f32 v{M}, v{M}, v{T+10}")
        for i in range(4): a(f"v_sub_f32 v{T+4+2*i}, v{T+4+2*i}, v{M}")
        for i in range(4): a(f"v_exp_f32 v{T+4+2*i}, v{T+4+2*i}")
        a(f"v_mul_f32 v{M+1}, v{T+4}, v{T+5}")
        for i in range(1,4): a(f"v_fmac_f32 v{M+1}, v{T+4+2*i}, v{T+5+2*i}")
        a("s_waitcnt lgkmcnt(0)")
        a(f"v_mul_f32 v{T+2}, v{T+4}, v{T+12}\nv_mul_f32 v{T+3}, v{T+4}, v{T+13}")
        for i in range(1,4): a(f"v_fmac_f32 v{T+2}, v{T+4+2*i}, v{T+12+2*i}\nv_fmac_f32 v{T+3}, v{T+4+2*i}, v{T+13+2*i}")
        a(f"v_cvt_pk_bf16_f32 v{T+2}, v{T+2}, v{T+3}")
        self.region(R_O)
        self.store_local(f"global_store_dword v{vPO}, v{T+2}, {sp(pR)}")
        self.region(R_OS)
        a("s_mov_b64 exec, 1")
        self.store_local(f"global_store_dwordx2 v{vPOS}, {v(M,2)}, {sp(pR)}")
        a("s_mov_b64 exec, -1")
        self.stamp("O pub")
        if it == 0:
            l = self.only_loader(); self.dma_wo(1); a(f"{l}:")

    def o_phase(self, it):
        a = self.a; c = self.c
        self.region(R_O)
        a(f"s_add_u32 s{sT3}, s{pIT}, {R_OS}\ns_addc_u32 s{sT3+1}, s{pIT+1}, 0")
        self.poll([f"global_load_dwordx4 {v(A0,4)}, v{vO}, {sp(pR)} sc1", f"global_load_dwordx4 {v(A1,4)}, v{vO}, {sp(pR)} offset:128 sc1",
                   f"global_load_dwordx2 {v(vOSD,2)}, v{vOS}, {sp(sT3)} sc1"], list(range(A0, A0+10)), delay=c.d_O)
        self.stamp("O got")
        if it == 0:
            a("s_barrier")
            self.w_read_addrs(BUF_B, 14)
            self.w_reads(Wo, 4, range(4))
            a("s_waitcnt lgkmcnt(0)")
        mm, al, dn = T+16, T+17, T+18
        wA, wB = T+19, T+20
        pre = [f"v_max_f32_dpp v{mm}, v{vOSD}, v{vOSD} row_ror:4 {DPP}",
               f"v_max_f32_dpp v{mm}, v{mm}, v{mm} row_ror:2 {DPP}",
               f"v_max_f32_dpp v{mm}, v{mm}, v{mm} row_ror:1 {DPP}",
               f"v_sub_f32 v{al}, v{vOSD}, v{mm}",
               f"v_exp_f32 v{al}, v{al}",
               f"v_mul_f32 v{dn}, v{al}, v{vOSD+1}",
               f"v_add_f32_dpp v{dn}, v{dn}, v{dn} row_ror:4 {DPP}",
               f"v_add_f32_dpp v{dn}, v{dn}, v{dn} row_ror:2 {DPP}",
               f"v_add_f32_dpp v{dn}, v{dn}, v{dn} row_ror:1 {DPP}",
               f"v_rcp_f32 v{dn}, v{dn}",
               f"v_mul_f32 v{al}, v{al}, v{dn}",
               f"v_mov_b32_dpp v{wA}, v{al} row_newbcast:0 {DPP}",
               f"v_mov_b32_dpp v{wB}, v{al} row_newbcast:1 {DPP}"]
        self.gemv(Wo, PO, weighted=(wA, wB), pre_ops=pre)
        self.barrier()
        if it == 0:
            l = self.only_loader()
            l7 = a.lbl("Ls7"); a(f"s_cmp_eq_u32 s{sS}, 7\ns_cbranch_scc1 {l7}")
            self.g_dma()
            a(f"{l7}:"); a(f"{l}:")
        l = self.only_wave(3)
        self.final_sum(PO, T+12); a("s_waitcnt lgkmcnt(0)"); self.final_sum2(T+12)
        lg = a.lbl("Lrg"); a(f"s_cmp_lg_u32 s{sG}, 0\ns_cbranch_scc1 {lg}\nv_add_f32 v{T+12}, v{T+12}, v{vRES}"); a(f"{lg}:")
        self.pack_pairs(T+12, T+13)
        self.region(R_X)
        a(f"s_mov_b64 exec, {sp(mEVEN)}")
        a(f"global_store_dword v{vPX}, v{T+13}, {sp(pR)} sc1")
        a("s_mov_b64 exec, -1")
        self.stamp("X pub")
        a(f"{l}:")

    def g_dma(self):
        a = self.a; c = self.c
        a(f"v_lshrrev_b32 v{T}, 3, v{vL}\nv_and_b32 v{T+1}, 7, v{vL}\nv_bfe_u32 v{T+2}, v{vL}, 4, 1\nv_lshlrev_b32 v{T+2}, 1, v{T+2}\nv_xor_b32 v{T+1}, v{T+1}, v{T+2}")
        a(f"v_cmp_gt_u32 vcc, 4, v{T+1}")
        a(f"v_and_b32 v{T+1}, 3, v{T+1}\nv_lshlrev_b32 v{T+1}, 4, v{T+1}\nv_mul_u32_u24 v{T}, 3584, v{T}\nv_add_u32 v{T}, v{T}, v{T+1}")
        a(f"s_lshl_b32 s{sT0}, s{sFS}, 6\ns_mul_i32 s{sT1}, s{sW}, {32*8*3584}\ns_add_u32 s{sT0}, s{sT0}, s{sT1}\nv_add_u32 v{T}, s{sT0}, v{T}")
        a(f"v_mov_b32 v{T+2}, s{pUP}\nv_mov_b32 v{T+3}, s{pUP+1}\nv_mov_b32 v{T+4}, s{pGATE}\nv_mov_b32 v{T+5}, s{pGATE+1}")
        a(f"v_cndmask_b32 v{T+6}, v{T+2}, v{T+4}, vcc\nv_cndmask_b32 v{T+7}, v{T+3}, v{T+5}, vcc")
        a(f"v_cndmask_b32 v{T+8}, v{T+4}, v{T+2}, vcc\nv_cndmask_b32 v{T+9}, v{T+5}, v{T+3}, vcc")
        a(f"v_add_co_u32 v{T+6}, vcc, v{T+6}, v{T}\nv_addc_co_u32 v{T+7}, vcc, 0, v{T+7}, vcc")
        a(f"v_add_u32 v{T}, {8*3584}, v{T}")
        a(f"v_add_co_u32 v{T+8}, vcc, v{T+8}, v{T}\nv_addc_co_u32 v{T+9}, vcc, 0, v{T+9}, vcc")
        a(f"s_lshl_b32 s{sT0}, s{sW}, 15\ns_add_u32 m0, s{sT0}, {BUF_A}")
        fl = " nt" if c.w_nt else ""
        l = a.lbl("Lgd")
        a(f"s_mov_b32 s{sCNT}, 16\ns_mov_b32 s{sT1}, {16*3584}")
        a(f"{l}:")
        for r in (T+6, T+8):
            a(f"global_load_lds_dwordx4 {v(r,2)}, off{fl}")
            a(f"s_add_u32 m0, m0, 1024")
            a(f"v_add_co_u32 v{r}, vcc, s{sT1}, v{r}\nv_addc_co_u32 v{r+1}, vcc, 0, v{r+1}, vcc")
        a(f"s_sub_u32 s{sCNT}, s{sCNT}, 1\ns_cmp_lg_u32 s{sCNT}, 0\ns_cbranch_scc1 {l}")

    def d_dma(self):
        a = self.a; c = self.c
        self.srd(pDOWN, 1835008)
        a(f"v_lshrrev_b32 v{T}, 3, v{vL}\nv_and_b32 v{T+1}, 7, v{vL}\nv_bfe_u32 v{T+2}, v{vL}, 4, 1\nv_lshlrev_b32 v{T+2}, 1, v{T+2}\nv_xor_b32 v{T+1}, v{T+1}, v{T+2}")
        a(f"v_lshlrev_b32 v{T+1}, 4, v{T+1}\nv_lshl_add_u32 v{T+3}, v{T}, 10, v{T+1}\nv_xor_b32 v{T+4}, 64, v{T+3}")
        for wl in range(2):
            a(f"s_lshl_b32 s{sT0}, s{sW}, 1\ns_add_u32 s{sT0}, s{sT0}, {wl}\ns_mul_i32 s{sT1}, s{sT0}, 56\ns_mul_i32 s{sOFF}, s{sS}, 224\ns_add_u32 s{sOFF}, s{sOFF}, s{sT1}")
            a(f"s_lshl_b32 s{sOFF}, s{sOFF}, 10\ns_lshl_b32 s{sT1}, s{sG}, 7\ns_add_u32 s{sOFF}, s{sOFF}, s{sT1}")
            a(f"s_lshl_b32 s{sT0}, s{sT0}, 13\ns_add_u32 m0, s{sT0}, {BUF_B}")
            self.dma_loop(4, [T+3, T+4], 8192, c.w_nt)

    def g_phase(self, it):
        a = self.a; c = self.c
        l7 = a.lbl("Lg7")
        a(f"s_cmp_eq_u32 s{sS}, 7\ns_cbranch_scc1 {l7}")
        self.region(R_X)
        self.poll([f"global_load_dwordx4 {v(A0,4)}, v{vXY}, {sp(pR)} sc1", f"global_load_dwordx4 {v(A1,4)}, v{vXY}, {sp(pR)} offset:128 sc1"],
                  list(range(A0, A0+8)), delay=c.d_X)
        self.stamp("X got")
        if it == 0:
            l = self.only_loader(); self.d_dma(); a(f"{l}:")
            a("s_barrier")
            self.w_read_addrs(BUF_A, 14)
            self.w_reads(Wg, 4, range(4))
            a("s_waitcnt lgkmcnt(0)")
            o0 = ACC2+32
            for r in range(4): a(f"v_mov_b32 v{o0+r}, 0")
            a(f"s_mov_b64 exec, {sp(mA2)}")
            for r in range(4): a(f"v_mov_b32 v{o0+r}, 0x3f803f80")
            a("s_mov_b64 exec, -1")
            self.gemv(Wg, PGC, A0r=o0, A1r=o0)
        self.gemv(Wg, PG, stats=STG)
        self.barrier()
        l = self.only_wave(3)
        if it == 0:
            self.final_sum(PGC, vCG); a("s_waitcnt lgkmcnt(0)"); self.final_sum2(vCG)
        self.final_sum(PG, T+12)
        self.ln_fix(STG, T+12, vCG)
        z, u_ = T+12, T+13
        a(f"v_mov_b32 v{u_}, v{z}\nv_permlane32_swap_b32 v{z}, v{u_}")
        a(f"v_mul_f32 v{z}, 0xbfb8aa3b, v{z}\nv_exp_f32 v{z}, v{z}\nv_add_f32 v{z}, 1.0, v{z}\nv_rcp_f32 v{z}, v{z}\nv_mul_f32 v{z}, v{z}, v{u_}")
        self.pack_pairs(z, T+14)
        self.region(R_H)
        a(f"s_mov_b64 exec, {sp(mEV32)}")
        a(f"global_store_dword v{vPH}, v{T+14}, {sp(pR)} sc1")
        a("s_mov_b64 exec, -1")
        self.stamp("H pub")
        lg = a.lbl("Lrs"); a(f"s_cmp_lg_u32 s{sS}, 0\ns_cbranch_scc1 {lg}")
        a(f"s_lshl_b32 s{sT0}, s{sB}, 13\ns_lshl_b32 s{sT1}, s{sG}, 7\ns_add_u32 s{sT0}, s{sT0}, s{sT1}\nv_lshlrev_b32 v{T+20}, 1, v{vL}\nv_add_u32 v{T+20}, s{sT0}, v{T+20}")
        self.sum8_resid(R_X, T+20)
        a(f"{lg}:")
        a(f"{l}:")
        if it == 0:
            lskip = a.lbl("Lgs"); a(f"s_branch {lskip}")
            a(f"{l7}:")
            l = self.only_loader(); self.d_dma(); a(f"{l}:")
            a(f"{lskip}:")
        else:
            a(f"{l7}:")

    def d_phase(self, it):
        a = self.a; c = self.c
        for r in range(4): a(f"v_mov_b32 v{A0+r}, 0")
        self.region(R_H)
        self.poll([f"global_load_dwordx4 {v(A0,4)}, v{vH}, {sp(pR)} sc1"], list(range(A0, A0+4)), mask=mD, delay=c.d_H)
        self.stamp("H got")
        if it == 0:
            a("s_barrier")
            self.w_read_addrs(BUF_B, 13)
            self.w_reads(Wd, 2, range(4))
            a("s_waitcnt lgkmcnt(0)")
        for ct in range(4):
            for ts in range(2):
                a(f"{MF} {v(ACC+(ct*2+ts)*4,4)}, {v(A0,4)}, {Wd(ts,ct)}, 0")
        val = T+12
        for ct in range(4): a(f"v_add_f32 v{val+ct}, v{ACC+ct*8}, v{ACC+ct*8+5}")
        a(f"s_mov_b32 s{sT3}, 0xffff\ns_mov_b32 s{sT3+1}, 0\ns_mov_b64 exec, {sp(sT3)}")
        a(f"ds_write_b128 v{vDW}, {v(val,4)}")
        a("s_mov_b64 exec, -1")
        self.barrier()
        l = self.only_wave(3)
        a(f"ds_read2st64_b32 {v(T,2)}, v{vDR} offset0:0 offset1:1\nds_read2st64_b32 {v(T+2,2)}, v{vDR} offset0:2 offset1:3\ns_waitcnt lgkmcnt(0)")
        self.final_sum2(T+12)
        lg = a.lbl("Lrs"); a(f"s_cmp_lg_u32 s{sS}, 0\ns_cbranch_scc1 {lg}\nv_add_f32 v{T+12}, v{T+12}, v{vRES}"); a(f"{lg}:")
        self.region(R_YZ)
        if it == 0:
            self.pack_pairs(T+12, T+13)
            a(f"s_mov_b64 exec, {sp(mEVEN)}")
            a(f"global_store_dword v{vPY}, v{T+13}, {sp(pR)} sc1")
            a("s_mov_b64 exec, -1")
            self.stamp("Y pub")
        else:
            self.store_local(f"global_store_dword v{vPZ}, v{T+12}, {sp(pR)}")
            self.stamp("Z pub")
            lz = a.lbl("Lz"); a(f"s_cmp_lg_u32 s{sS}, 0\ns_cbranch_scc1 {lz}")
            a(f"s_lshl_b32 s{sT0}, s{sGRP}, 11\nv_lshlrev_b32 v{T+20}, 2, v{vL}\nv_add_u32 v{T+20}, s{sT0}, v{T+20}")
            self.poll([f"global_load_dword v{64+p}, v{T+20}, {sp(pR)} offset:{256*p} sc1" for p in range(8)], list(range(64, 72)), delay=c.d_Z)
            a("v_add_f32 v64, v64, v65\nv_add_f32 v66, v66, v67\nv_add_f32 v68, v68, v69\nv_add_f32 v70, v70, v71\nv_add_f32 v64, v64, v66\nv_add_f32 v68, v68, v70")
            a(f"v_add_f32 v{T+12}, v64, v68")
            self.pack_pairs(T+12, T+13)
            a(f"s_lshl_b32 s{sT0}, s{sB}, 10\ns_lshl_b32 s{sT1}, s{sG}, 7\ns_add_u32 s{sT0}, s{sT0}, s{sT1}\nv_lshlrev_b32 v{T+14}, 1, v{vL}\nv_add_u32 v{T+14}, s{sT0}, v{T+14}")
            a(f"s_mov_b64 exec, {sp(mEVEN)}")
            a(f"global_store_dword v{T+14}, v{T+13}, {sp(pOUT)}")
            a("s_mov_b64 exec, -1")
            self.stamp("out")
            a(f"{lz}:")
        a(f"{l}:")

    def build(self):
        a = self.a
        self.prologue()
        self.stamp("entry", reg=94)
        self.stamp("start")
        for it in range(2):
            if it == 1:
                a(f"s_add_u32 s{pIT}, s{pIT}, {IT_STRIDE}\ns_addc_u32 s{pIT+1}, s{pIT+1}, 0")
            self.q_phase(it)
            self.attention(it)
            self.o_phase(it)
            self.g_phase(it)
            self.d_phase(it)
        self.stamp_flush()
        if self.c.dbgtime:
            l = self.only_wave(3)
            a("s_waitcnt vmcnt(0)\ns_memrealtime s[96:97]\ns_waitcnt lgkmcnt(0)\ns_not_b32 s100, s100\ns_mov_b64 exec, 1")
            a(f"v_mov_b32 v60, 8\nv_mov_b32 v61, s100\nglobal_atomic_umax v60, v61, {sp(pDBG)} sc1")
            a(f"v_mov_b32 v62, 12\nv_mov_b32 v63, s96\nglobal_atomic_umax v62, v63, {sp(pDBG)} sc1")
            a(f"{l}:")
        a("L_end:")
        a("s_endpgm")
        a("L_text_end:")
        hdr = ["; Persistent single-launch decode kernel: 256 workgroups (one per CU), 4 waves each.",
               "; Generated by gen/genk.py (hand-designed schedule).",
               f"; @launch grid=(256,1,1) block=(256,1,1) lds={LDS_SIZE}"]
        return kernel_file(NAME, a.text(), hdr, vgpr=512, sgpr=102, accum=256)

if __name__ == "__main__":
    import argparse
    ap = argparse.ArgumentParser()
    ap.add_argument("-o", default="interleave_layers__sliding_block_cached__glu_gated_glu__decode.s")
    ap.add_argument("--stamps", action="store_true")
    ap.add_argument("--set", action="append", default=[])
    args = ap.parse_args()
    c = Cfg(); c.stamps = args.stamps
    for kv in args.set:
        k, val = kv.split("="); setattr(c, k, int(val))
    g = Gen(c)
    txt = g.build()
    open(args.o, "w").write(txt)
    print("instructions:", g.a.count, "nops inserted:", g.a.nops, "stamps:", g.stamp_names)
```

```python
import re

TRANS = ("v_exp_f32","v_log_f32","v_rcp_f32","v_rsq_f32","v_sqrt_f32","v_sin_f32","v_cos_f32","v_rcp_iflag_f32")
_reg = re.compile(r"^(-|abs\()?\s*([vas])(\d+)\)?$")
_rng = re.compile(r"^(-)?([vas])\[(\d+):(\d+)\]$")

def regs_of(tok):
    tok = tok.strip()
    if tok == "vcc": return {("s","vcc")}
    if tok == "exec": return {("s","exec")}
    if tok == "m0": return {("s","m0")}
    m = _rng.match(tok)
    if m: return {(m.group(2), i) for i in range(int(m.group(3)), int(m.group(4))+1)}
    m = _reg.match(tok)
    if m: return {(m.group(2), int(m.group(3)))}
    return set()

class Ins:
    __slots__=("text","mn","ops","w","r","kind","srcA","srcB","srcC","dpp","store_data","nstates","sel")
    def __init__(self, text):
        self.text = text
        t = text.split(";")[0].strip()
        parts = t.split(None, 1)
        self.mn = parts[0]
        rest = parts[1] if len(parts) > 1 else ""
        ops=[]; cur=""; depth=0
        for ch in rest:
            if ch in "[(": depth+=1
            if ch in "])": depth-=1
            if ch=="," and depth==0: ops.append(cur.strip()); cur=""
            else: cur+=ch
        if cur.strip(): ops.append(cur.strip())
        clean=[]
        for o in ops:
            clean.append(o.split()[0] if o.split() else o)
        self.ops = clean
        self.dpp = ("_dpp" in self.mn) or (" row_" in t) or ("quad_perm" in t)
        self.w=set(); self.r=set(); self.srcA=self.srcB=self.srcC=set(); self.store_data=set(); self.sel=set()
        self.nstates = 1
        mn=self.mn
        R=lambda i: regs_of(clean[i]) if i < len(clean) else set()
        allr=lambda a: set().union(*[regs_of(x) for x in clean[a:]]) if len(clean)>a else set()
        if mn=="s_nop":
            self.kind="nop"; self.nstates=int(clean[0],0)+1
        elif mn.startswith("v_mfma"):
            self.kind="mfma"; self.w=R(0); self.srcA=R(1); self.srcB=R(2); self.srcC=R(3); self.r=self.srcA|self.srcB|self.srcC
        elif mn.startswith("v_cmp"):
            self.kind="valu"; self.w=R(0); self.r=allr(1)
        elif mn.startswith("v_readlane") or mn.startswith("v_readfirstlane"):
            self.kind="valu"; self.w=R(0); self.r=allr(1)
            if mn.startswith("v_readlane"): self.sel=R(2)
        elif mn.startswith("v_writelane"):
            self.kind="valu"; self.w=R(0); self.r=allr(0); self.sel=R(2)
        elif mn.startswith("v_permlane"):
            self.kind="valu"; self.w=R(0)|R(1); self.r=R(0)|R(1)
        elif mn.startswith("v_"):
            self.kind="valu"; self.w=R(0); self.r=allr(1)
            base=mn.replace("_e32","").replace("_e64","").replace("_dpp","")
            if base in ("v_add_co_u32","v_sub_co_u32","v_addc_co_u32","v_subb_co_u32"):
                self.w=R(0)|R(1); self.r=allr(2)
            if base.startswith("v_fmac") or base.startswith("v_dot2c") or base.startswith("v_mac"): self.r|=R(0)
            if base=="v_cndmask_b32" and len(clean)==3: self.r|={("s","vcc")}
            if self.dpp: self.r|=R(0)
        elif mn.startswith("ds_read") or mn.startswith("ds_bpermute") or mn.startswith("ds_swizzle"):
            self.kind="ds"; self.w=R(0); self.r=allr(1)
        elif mn.startswith("ds_"):
            self.kind="ds"; self.r=allr(0)
        elif mn.startswith("global_load_lds") :
            self.kind="vmem"; self.r=allr(0)|{("s","m0")}
        elif mn.startswith("buffer_load") and " lds" in t:
            self.kind="vmem"; self.r=allr(0)|{("s","m0")}
        elif mn.startswith("global_load") or mn.startswith("buffer_load"):
            self.kind="vmem"; self.w=R(0); self.r=allr(1)
        elif mn.startswith("global_store"):
            self.kind="vmem"; self.r=allr(0)
            if "x4" in mn or "x3" in mn: self.store_data=R(1)
        elif mn.startswith("buffer_store"):
            self.kind="vmem"; self.r=allr(0)
            if "x4" in mn or "x3" in mn: self.store_data=R(0)
        elif mn.startswith("global_atomic") or mn.startswith("buffer_atomic"):
            self.kind="vmem"; self.r=allr(0)
            if " sc0" in t: self.w=R(0)
        elif mn.startswith("s_load") or mn.startswith("s_memtime") or mn.startswith("s_memrealtime"):
            self.kind="smem"; self.w=R(0); self.r=allr(1)
        elif mn.startswith("s_cmp") or mn.startswith("s_bitcmp"):
            self.kind="salu"; self.r=allr(0)
        elif mn.startswith("s_cbranch") or mn in ("s_branch","s_barrier","s_waitcnt","s_sleep","s_endpgm","s_setprio"):
            self.kind="ctl"
        elif mn.startswith("s_"):
            self.kind="salu"; self.w=R(0); self.r=allr(1)
            if "saveexec" in mn: self.w|={("s","exec")}; self.r|={("s","exec")}
        else:
            raise ValueError("unknown instr: "+text)

def vonly(s): return {x for x in s if x[0] in "va"}
def sonly(s): return {x for x in s if x[0]=="s"}

def need(p, c):
    n=0
    pv=vonly(p.w); ps=sonly(p.w)
    if p.kind=="valu":
        if c.kind=="mfma" and pv & c.r: n=max(n,2)
        if c.kind=="valu":
            if c.dpp and pv & c.r: n=max(n,2)
            if c.mn.startswith("v_permlane") and pv & c.r: n=max(n,2)
            if (c.mn.startswith("v_readlane") or c.mn.startswith("v_readfirstlane")) and pv & c.r: n=max(n,1)
            if ps & c.sel: n=max(n,4)
            if ps & (c.r - c.sel): n=max(n,2)
            base=p.mn.replace("_e32","").replace("_e64","").replace("_dpp","")
            if base in TRANS and pv & c.r: n=max(n,1)
            if base.startswith("v_dot"):
                cb=c.mn.replace("_e32","").replace("_e64","").replace("_dpp","")
                if cb!=base and pv & (c.r|c.w): n=max(n,3)
        if p.mn.startswith("v_dot") and c.kind in ("ds","vmem","mfma") and pv & c.r: n=max(n,3)
        if c.kind in ("vmem",) and ps & c.r: n=max(n,5)
        if c.kind=="ds" and ps & c.r: n=max(n,5)
    if p.kind=="mfma":
        if c.kind=="mfma":
            if pv & (c.srcA|c.srcB): n=max(n,8)
            if pv & c.srcC:
                n=max(n, 0 if (c.srcC==p.w) else 6)
            elif pv & c.w: n=max(n,6)
        elif c.kind in ("valu","ds","vmem"):
            if pv & (c.r|c.w): n=max(n,8)
        if c.kind=="valu" and vonly(p.srcC) & c.w: n=max(n,3)
    if p.kind=="salu" and ("s","m0") in p.w:
        if c.kind=="vmem" and ("s","m0") in c.r: n=max(n,1)
        if c.kind=="valu" and ("s","m0") in c.r: n=max(n,1)
    if p.kind=="vmem" and p.store_data and c.kind=="valu" and (p.store_data & c.w): n=max(n,2)
    if p.kind=="vmem" and p.store_data and c.kind in ("ds","vmem") and (p.store_data & c.w): n=max(n,1)
    return n

class Asm:
    def __init__(self, auto=True):
        self.lines=[]; self.auto=auto
        self.windows=[[]]
        self.pending={}
        self._l=0; self.nops=0; self.count=0
    def lbl(self, base="L"):
        self._l+=1; return f"{base}_{self._l}"
    def comment(self, s): self.lines.append("; "+s)
    def label(self, name):
        self.lines.append(name+":")
        if name in self.pending:
            self.windows += self.pending.pop(name)
    def _advance(self, ins):
        new=[]
        for w in self.windows:
            w=[(p,d+ins.nstates) for (p,d) in w if d+ins.nstates<24]
            new.append(w)
        if ins.kind in ("valu","mfma","salu","vmem"):
            for w in new: w.append((ins,0))
        seen=[]; out=[]
        for w in new:
            key=tuple((id(p),d) for p,d in w)
            if key not in seen: seen.append(key); out.append(w)
        self.windows=out
    def raw(self, s):
        self.lines.append(s)
    def __call__(self, s):
        for l in s.split("\n"):
            l=l.strip()
            if not l: continue
            if l.startswith(";"): self.lines.append(l); continue
            if l.endswith(":"): self.label(l[:-1]); continue
            if l.startswith("."): self.lines.append(l); continue
            ins=Ins(l)
            if self.auto and ins.kind not in ("nop","ctl"):
                k=0
                for w in self.windows:
                    for (p,d) in w:
                        k=max(k, need(p,ins)-d)
                if k>0:
                    self.nops+=k
                    while k>0:
                        n=min(k,16); nop=Ins(f"s_nop {n-1}"); self.lines.append(nop.text); self._advance(nop); k-=n
            self.lines.append(l); self.count+=1
            self._advance(ins)
            if ins.mn.startswith("s_cbranch") or ins.mn=="s_branch":
                tgt=l.split()[-1]
                self.pending.setdefault(tgt,[]).extend([list(w) for w in self.windows])
                if ins.mn=="s_branch": self.windows=[[]]
            if ins.mn=="s_endpgm": self.windows=[[]]
    def text(self): return "\n".join(self.lines)+"\n"

def kernel_file(name, body, header_lines, vgpr=512, sgpr=102, accum=256):
    out=list(header_lines)
    out+=['.amdgcn_target "amdgcn-amd-amdhsa--gfx950"', ".text", f".globl {name}", ".p2align 8", f".type {name},@function", f"{name}:", body.rstrip("\n"),
          '.section .rodata,"a"', ".p2align 6", f".amdhsa_kernel {name}", f"  .amdhsa_next_free_vgpr {vgpr}", f"  .amdhsa_next_free_sgpr {sgpr}",
          f"  .amdhsa_accum_offset {accum}", "  .amdhsa_group_segment_fixed_size 0", "  .amdhsa_kernarg_size 96", "  .amdhsa_user_sgpr_count 2",
          "  .amdhsa_user_sgpr_kernarg_segment_ptr 1", "  .amdhsa_system_sgpr_workgroup_id_x 1", ".end_amdhsa_kernel"]
    return "\n".join(out)+"\n"
```

```python
import sys, os
sys.path.insert(0, os.path.dirname(os.path.abspath(__file__)))
from asm2 import Asm, kernel_file

NAME = "interleave_layers__sliding_block_cached__glu_gated_glu__decode_kernel"

class Cfg:
    stamps = False
    spin_limit = 40000
    d_X = 6; d_H = 6; d_Y = 6
    d_O = 0; d_Q = 0; d_Z = 0
    kv_nt = True
    w_nt = False
    force_slow = False
    code_prefetch = True
    dbgtime = False

IT_STRIDE = 0x80000
R_Q  = 0
R_O  = 32*1024
R_OS = 288*1024
R_X  = 296*1024
R_H  = 328*1024
R_YZ = 344*1024
R_Q0 = 1024*1024
STAMP_OFF = 2*1024*1024
BUF_A = 0
BUF_B = 65536
E = 131072
PQ, PQC, PO, PG, PGC, PD, QB = E, E+1024, E+2048, E+3072, E+4096, E+5120, E+6144
STQ, STG, FL, SB = E+7168, E+7232, E+7296, E+7360
OB = E+8192
LDS_SIZE = E+16384

sG, sB, sS, sW, sLOC = 3, 4, 5, 6, 7
pX, pK, pV, pWQ, pWO, pGATE, pUP, pDOWN, pOUT, pDBG, pWS = 8, 10, 12, 14, 16, 20, 22, 24, 26, 28, 30
SRD = 32
sOFF, sCNT, sT0, sT1 = 36, 37, 38, 39
mA2, mD, mQ = 40, 42, 44
pIT, pR = 46, 48
mEVEN, mODD, mEV32 = 50, 52, 54
sSPIN, sGRP, sFS, sT2 = 56, 57, 58, 59
m0_32, mLOW4 = 60, 62
sC = 18
sT3, sT4 = 8, 9
sGA = 64
SRD2 = 96
sSTAMP = 100
sLW = 19
def sp(r): return f"s[{r}:{r+1}]"

vL = 0
vXY, vO, vOS, vH, vQ = 1, 2, 3, 4, 5
vPQ, vPO, vPOS, vPX, vPH, vPY, vPZ = 6, 7, 8, 9, 10, 11, 12
vPW, vPR = 13, 14
vCQ, vCG, vRES = 15, 16, 17
vOD, vOC = 18, 19
vONE = 20
vSTW, vSBW, vSBR, vDW, vDR = 24, 25, 26, 27, 28
vES = 29
vT = 30
A0, A1 = 32, 36
vOSD = 40
T = 42
ACC = 64
GR, SX = 96, 100
ACC2 = 104
QF, SA, PP, OA, LA = 64, 80, 96, 104, 136
DT, GT = 160, 192
vWQe, vWQo, vK0, vVe, vVo, vWOe, vWOo = 140, 141, 142, 146, 147, 148, 149
vGE, vGO = 150, 152
aK, aV, aWQ, aWO = 0, 64, 128, 192
def v(r, n=1): return f"v{r}" if n == 1 else f"v[{r}:{r+n-1}]"
def a_(r, n=1): return f"a{r}" if n == 1 else f"a[{r}:{r+n-1}]"
def Wq(ts, ct): return a_(aWQ + (ct*4+ts)*4, 4)
def Wo(ts, ct): return a_(aWO + (ct*4+ts)*4, 4)
def Wg(ts, ct): return v(GT + (ct*4+ts)*4, 4)
def Wd(ts, ct): return v(DT + (ct*2+ts)*4, 4)
DPP = "row_mask:0xf bank_mask:0xf"
MF = "v_mfma_f32_16x16x32_bf16"

class Gen:
    def __init__(self, cfg):
        self.c = cfg
        self.a = Asm()
        self.nstamp = 0
        self.vq = []
        self.slot = {}
        self.stamp_names = []

    def stamp(self, name, reg=None):
        if not self.c.stamps: return
        a = self.a
        i = self.nstamp; self.nstamp += 1; self.stamp_names.append(name)
        if reg is None:
            a(f"s_memrealtime {sp(sSTAMP)}\ns_waitcnt lgkmcnt(0)")
        a(f"v_writelane_b32 v159, s{sSTAMP if reg is None else reg}, {i}")
    def stamp_flush(self):
        if not self.c.stamps: return
        a = self.a
        a(f"s_lshl_b32 s{sT0}, s2, 2\ns_add_u32 s{sT0}, s{sT0}, s{sW}\ns_lshl_b32 s{sT0}, s{sT0}, 8\ns_add_u32 s{sT0}, s{sT0}, {STAMP_OFF}")
        a(f"v_lshlrev_b32 v158, 2, v{vL}\nv_add_u32 v158, s{sT0}, v158\ns_mov_b64 exec, -1\nglobal_store_dword v158, v159, {sp(pWS)}")

    def region(self, off):
        if off >= 0:
            self.a(f"s_add_u32 s{pR}, s{pIT}, {off}\ns_addc_u32 s{pR+1}, s{pIT+1}, 0")
        else:
            self.a(f"s_sub_u32 s{pR}, s{pIT}, {-off}\ns_subb_u32 s{pR+1}, s{pIT+1}, 0")

    def srd(self, ptr, nbytes):
        self.a(f"s_mov_b32 s{SRD}, s{ptr}\ns_and_b32 s{SRD+1}, s{ptr+1}, 0xffff\ns_mov_b32 s{SRD+2}, {nbytes}\ns_mov_b32 s{SRD+3}, 0x20000")

    def dma_loop(self, n_iter, vregs, soff_step, nt):
        a = self.a
        fl = "nt " if nt else ""
        l = a.lbl("Ldma")
        a(f"s_mov_b32 s{sCNT}, {n_iter}")
        a(f"{l}:")
        for r in vregs:
            a(f"buffer_load_dwordx4 v{r}, s[{SRD}:{SRD+3}], s{sOFF} offen {fl}lds")
            a(f"s_add_u32 m0, m0, 1024\ns_add_u32 s{sOFF}, s{sOFF}, {soff_step}")
        a(f"s_sub_u32 s{sCNT}, s{sCNT}, 1\ns_cmp_lg_u32 s{sCNT}, 0\ns_cbranch_scc1 {l}")

    def poll(self, loads, regs, mask=None, delay=0):
        a = self.a
        if delay: a(f"s_sleep {delay}")
        if mask is not None: a(f"s_mov_b64 exec, {sp(mask)}")
        l = a.lbl("Lpoll"); d = a.lbl("Lgot")
        a(f"s_mov_b32 s{sSPIN}, 0")
        a(f"{l}:")
        for s in loads: a(s)
        a(f"s_add_u32 s{sSPIN}, s{sSPIN}, 1\ns_cmp_ge_u32 s{sSPIN}, {self.c.spin_limit}\ns_cbranch_scc1 {d}")
        a("s_waitcnt vmcnt(0)")
        cur, rest = regs[0], list(regs[1:])
        while rest:
            if len(rest) >= 2:
                a(f"v_max3_u32 v{T}, v{cur}, v{rest[0]}, v{rest[1]}"); rest = rest[2:]
            else:
                a(f"v_max_u32 v{T}, v{cur}, v{rest[0]}"); rest = rest[1:]
            cur = T
        a(f"v_cmp_eq_u32 vcc, -1, v{cur}")
        a(f"s_cbranch_vccnz {l}")
        a(f"{d}:")
        a("s_waitcnt vmcnt(0)")
        if mask is not None: a("s_mov_b64 exec, -1")

    def store_local(self, instr):
        a = self.a
        if self.c.force_slow:
            a(instr + " sc1"); return
        l1 = a.lbl("Lsl"); l2 = a.lbl("Lse")
        a(f"s_cmp_eq_u32 s{sLOC}, 0\ns_cbranch_scc1 {l1}")
        a(instr)
        a(f"s_branch {l2}")
        a(f"{l1}:")
        a(instr + " sc1")
        a(f"{l2}:")

    def only_wave(self, w):
        l = self.a.lbl("Lw")
        self.a(f"s_cmp_lg_u32 s{sW}, {w}\ns_cbranch_scc1 {l}")
        return l
    def only_loader(self):
        l = self.a.lbl("Lld")
        self.a(f"s_cmp_ge_u32 s{sW}, 2\ns_cbranch_scc1 {l}")
        return l

    def barrier(self):
        self.a("s_waitcnt lgkmcnt(0)\ns_barrier")

    def w_read_addrs(self, buf, wave_shift):
        a = self.a
        a(f"v_lshrrev_b32 v{T+4}, 4, v{vL}")
        a(f"v_bfe_u32 v{T+5}, v{vL}, 2, 2")
        a(f"v_lshl_add_u32 v{T+6}, v{T+4}, 3, v{T+5}")
        a(f"v_lshlrev_b32 v{T+6}, 7, v{T+6}")
        a(f"v_lshrrev_b32 v{T+7}, 1, v{T+5}")
        a(f"v_and_b32 v{T+4}, 1, v{T+4}")
        a(f"v_lshl_or_b32 v{T+7}, v{T+4}, 1, v{T+7}")
        a(f"v_lshlrev_b32 v{T+7}, 1, v{T+7}")
        a(f"v_bfe_u32 v{T+4}, v{vL}, 1, 1")
        a(f"v_xor_b32 v{T+7}, v{T+7}, v{T+4}")
        a(f"v_lshl_add_u32 v{T+6}, v{T+7}, 4, v{T+6}")
        a(f"v_and_b32 v{T+4}, 1, v{vL}")
        a(f"v_lshl_add_u32 v{T+6}, v{T+4}, 3, v{T+6}")
        a(f"s_lshl_b32 s{sT0}, s{sW}, {wave_shift}\ns_add_u32 s{sT0}, s{sT0}, {buf}")
        a(f"v_add_u32 v{T+6}, s{sT0}, v{T+6}")
        for ct in range(4):
            a(f"v_xor_b32 v{T+ct}, {32*ct}, v{T+6}")
    def w_reads(self, dest, nts, cts):
        a = self.a
        for ct in cts:
            for ts in range(nts):
                d = dest(ts, ct)
                pre = d[0]; base = int(d[2:d.index(":")])
                for h in range(2):
                    a(f"ds_read_b64_tr_b16 {pre}[{base+2*h}:{base+2*h+1}], v{T+ct} offset:{ts*4096+h*512}")

    def mf(self, d, A, B, c):
        self.a(f"{MF} {v(d,4)}, {A}, {B}, {c}")

    def gemv_mfmas(self, W, acc, A0r, A1r, cts=range(4)):
        out = []
        for ct in cts:
            d0 = acc + (ct*2)*4; d1 = d0 + 4
            out.append([f"{MF} {v(d0,4)}, {v(A0r,4)}, {W(0,ct)}, 0",
                        f"{MF} {v(d1,4)}, {v(A0r,4)}, {W(1,ct)}, 0",
                        f"{MF} {v(d0,4)}, {v(A1r,4)}, {W(2,ct)}, {v(d0,4)}",
                        f"{MF} {v(d1,4)}, {v(A1r,4)}, {W(3,ct)}, {v(d1,4)}"])
        return out
    def val_ops(self, acc, ct, dst, weighted=None):
        d0 = acc + (ct*2)*4; d1 = d0 + 4
        if weighted is None:
            return [f"v_add_f32 v{dst}, v{d0}, v{d0+2}", f"v_add_f32 v{d1+1}, v{d1+1}, v{d1+3}", f"v_add_f32 v{dst}, v{dst}, v{d1+1}"]
        wA, wB = weighted
        return [f"v_add_f32 v{d0}, v{d0}, v{d1+1}", f"v_add_f32 v{d0+2}, v{d0+2}, v{d1+3}",
                f"v_mul_f32 v{dst}, v{wA}, v{d0}", f"v_fmac_f32 v{dst}, v{wB}, v{d0+2}"]
    def row_reduce(self, val):
        a = self.a
        a(f"v_permlane32_swap_b32 v{val}, v{val+2}")
        a(f"v_permlane32_swap_b32 v{val+1}, v{val+3}")
        a(f"v_add_f32 v{val}, v{val}, v{val+2}")
        a(f"v_add_f32 v{val+1}, v{val+1}, v{val+3}")
        a(f"v_permlane16_swap_b32 v{val}, v{val+1}")
        a(f"v_add_f32 v{val}, v{val}, v{val+1}")
    def stats_mfmas(self):
        return [f"{MF} {v(GR,4)}, {v(A0,4)}, {v(A0,4)}, 0", f"{MF} {v(SX,4)}, {v(A0,4)}, {v(vONE,4)}, 0",
                f"{MF} {v(GR,4)}, {v(A1,4)}, {v(A1,4)}, {v(GR,4)}", f"{MF} {v(SX,4)}, {v(A1,4)}, {v(vONE,4)}, {v(SX,4)}"]
    def stats_ops(self):
        x2, x1, t = T+8, T+9, T+10
        return [f"v_add_f32 v{GR}, v{GR}, v{GR+2}", f"v_add_f32 v{GR+1}, v{GR+1}, v{GR+3}",
                f"v_add_f32 v{SX}, v{SX}, v{SX+1}", f"v_add_f32 v{SX+2}, v{SX+2}, v{SX+3}",
                f"v_cndmask_b32 v{x2}, v{GR}, v{GR+1}, {sp(mODD)}",
                f"v_add_f32 v{x1}, v{SX}, v{SX+2}",
                f"v_add_f32_dpp v{x2}, v{x2}, v{x2} row_ror:8 {DPP}",
                f"v_add_f32_dpp v{x2}, v{x2}, v{x2} row_ror:4 {DPP}",
                f"v_add_f32_dpp v{x2}, v{x2}, v{x2} row_ror:2 {DPP}",
                f"v_add_f32_dpp v{x2}, v{x2}, v{x2} row_ror:1 {DPP}",
                f"v_permlane32_swap_b32 v{x2}, v{x1}",
                f"v_add_f32 v{x2}, v{x2}, v{x1}",
                f"v_mov_b32 v{t}, v{x2}",
                f"v_permlane16_swap_b32 v{x2}, v{t}",
                f"v_add_f32 v{x2}, v{x2}, v{t}"]

    def gemv(self, W, parea, stats=None, weighted=None, pre_ops=(), A0r=A0, A1r=A1, acc=ACC):
        a = self.a
        val = T+12
        m = self.gemv_mfmas(W, acc, A0r, A1r)
        fill = list(pre_ops)
        if stats is not None:
            for s in self.stats_mfmas(): a(s)
        for s in m[0]: a(s)
        for s in m[1]: a(s)
        if stats is not None: fill += self.stats_ops()
        rest = m[2] + m[3]
        per = (len(fill) + len(rest) - 1) // len(rest) if fill else 0
        for s in rest:
            a(s)
            for _ in range(per):
                if fill: a(fill.pop(0))
        for s in fill: a(s)
        for ct in range(4):
            for s in self.val_ops(acc, ct, val+ct, weighted): a(s)
        self.row_reduce(val)
        a(f"ds_write_b32 v{vPW}, v{val} offset:{parea-E}")
        if stats is not None:
            a(f"s_mov_b64 exec, {sp(m0_32)}")
            a(f"ds_write_b32 v{vSTW}, v{T+8} offset:{stats-STQ}")
            a("s_mov_b64 exec, -1")

    def final_sum(self, parea, dst):
        a = self.a
        a(f"ds_read2st64_b32 {v(T,2)}, v{vPR} offset0:{(parea-E)//256} offset1:{(parea-E)//256+1}")
        a(f"ds_read2st64_b32 {v(T+2,2)}, v{vPR} offset0:{(parea-E)//256+2} offset1:{(parea-E)//256+3}")
    def final_sum2(self, dst):
        a = self.a
        a(f"v_add_f32 v{T}, v{T}, v{T+1}\nv_add_f32 v{T+2}, v{T+2}, v{T+3}\nv_add_f32 v{dst}, v{T}, v{T+2}")
    def ln_fix(self, st, z, cs):
        a = self.a
        a(f"ds_read_b128 {v(T+4,4)}, v{vES} offset:{st-E}")
        a(f"ds_read_b128 {v(T+8,4)}, v{vES} offset:{st-E+16}")
        a("s_waitcnt lgkmcnt(0)")
        self.final_sum2(z)
        a(f"v_add_f32 v{T+4}, v{T+4}, v{T+6}\nv_add_f32 v{T+5}, v{T+5}, v{T+7}")
        a(f"v_add_f32 v{T+8}, v{T+8}, v{T+10}\nv_add_f32 v{T+9}, v{T+9}, v{T+11}")
        a(f"v_add_f32 v{T+4}, v{T+4}, v{T+8}\nv_add_f32 v{T+5}, v{T+5}, v{T+9}")
        a(f"v_mul_f32 v{T+5}, 0x3b000000, v{T+5}")
        a(f"v_mul_f32 v{T+4}, 0x3b000000, v{T+4}")
        a(f"v_fma_f32 v{T+4}, -v{T+5}, v{T+5}, v{T+4}")
        a(f"v_max_f32 v{T+4}, 0, v{T+4}")
        a(f"v_add_f32 v{T+4}, 0x3727c5ac, v{T+4}")
        a(f"v_rsq_f32 v{T+4}, v{T+4}")
        a(f"v_fma_f32 v{z}, -v{T+5}, v{cs}, v{z}")
        a(f"v_mul_f32 v{z}, v{z}, v{T+4}")
    def pack_pairs(self, z, dst):
        a = self.a
        a(f"v_mov_b32_dpp v{T+1}, v{z} quad_perm:[1,1,3,3] {DPP}")
        a(f"v_cvt_pk_bf16_f32 v{dst}, v{z}, v{T+1}")
    def sum8_resid(self, off_region, voff_expr_reg):
        a = self.a
        self.region(off_region)
        for p in range(8):
            pass
        a(f"v_add_u32 v{T+8}, 4096, v{voff_expr_reg}")
        for p in range(8):
            base = voff_expr_reg if p < 4 else T+8
            a(f"global_load_ushort v{T+p}, v{base}, {sp(pR)} offset:{(p%4)*1024} sc1")
        a("s_waitcnt vmcnt(0)")
        for p in range(8): a(f"v_lshlrev_b32 v{T+p}, 16, v{T+p}")
        a(f"v_add_f32 v{T}, v{T}, v{T+1}\nv_add_f32 v{T+2}, v{T+2}, v{T+3}\nv_add_f32 v{T+4}, v{T+4}, v{T+5}\nv_add_f32 v{T+6}, v{T+6}, v{T+7}")
        a(f"v_add_f32 v{T}, v{T}, v{T+2}\nv_add_f32 v{T+4}, v{T+4}, v{T+6}\nv_add_f32 v{vRES}, v{T}, v{T+4}")

    def prologue(self):
        a = self.a; c = self.c
        a(f"s_cmp_ge_u32 s2, 256\ns_cbranch_scc1 L_end")
        if c.stamps: a("s_memrealtime s[94:95]\nv_mov_b32 v159, 0")
        if c.dbgtime: a("s_memrealtime s[100:101]")
        a(f"s_load_dwordx16 s[8:23], s[0:1], 0\ns_load_dwordx8 s[24:31], s[0:1], 64")
        a(f"v_lshrrev_b32 v{vT}, 6, v0\nv_and_b32 v{vL}, 63, v0")
        a(f"s_and_b32 s{sG}, s2, 7\ns_lshr_b32 s{sT0}, s2, 3\ns_lshr_b32 s{sB}, s{sT0}, 3\ns_and_b32 s{sS}, s{sT0}, 7")
        a(f"v_readfirstlane_b32 s{sW}, v{vT}")
        a(f"s_lshl_b32 s{sGRP}, s{sG}, 2\ns_add_u32 s{sGRP}, s{sGRP}, s{sB}")
        for r in range(8): a(f"v_mov_b32 v{A0+r}, 0")
        a(f"s_mov_b32 s{mA2}, 0x00030003\ns_mov_b32 s{mA2+1}, 0x00030003")
        a(f"v_lshrrev_b32 v{T+5}, 4, v{vL}\nv_and_b32 v{T+6}, 15, v{vL}")
        a(f"v_and_b32 v{T+12}, 1, v{vL}\nv_lshlrev_b32 v{T+12}, 2, v{T+12}\nv_add_u32 v{T+12}, v{T+12}, v{T+5}\nv_lshlrev_b32 v{T+12}, 4, v{T+12}")
        a(f"s_lshl_b32 s{sT0}, s{sB}, 10\ns_lshl_b32 s{sT1}, s{sW}, 8\ns_add_u32 s{sT1}, s{sT0}, s{sT1}")
        a(f"v_add_u32 v{T+12}, s{sT1}, v{T+12}")
        a("s_waitcnt lgkmcnt(0)")
        if c.dbgtime: a("v_mov_b32 v157, s100")
        a(f"s_mov_b64 exec, {sp(mA2)}")
        a(f"global_load_dwordx4 {v(A0,4)}, v{T+12}, {sp(pX)}")
        a(f"global_load_dwordx4 {v(A1,4)}, v{T+12}, {sp(pX)} offset:128")
        a("s_mov_b64 exec, -1")
        a(f"v_lshlrev_b32 v{T+12}, 4, v{vL}\nv_add_u32 v{T+12}, s{sT0}, v{T+12}")
        a(f"global_load_dwordx4 {v(72,4)}, v{T+12}, {sp(pX)}")
        l = self.only_wave(3)
        a(f"s_lshl_b32 s{sT1}, s{sS}, 7\ns_add_u32 s{sT0}, s{sT0}, s{sT1}\nv_lshlrev_b32 v{T+13}, 1, v{vL}\nv_add_u32 v{T+13}, s{sT0}, v{T+13}")
        a(f"global_load_ushort v{vRES}, v{T+13}, {sp(pX)}")
        a(f"s_lshl_b32 s{sT0}, s2, 12\nv_lshlrev_b32 v{T+13}, 4, v{vL}\nv_add_u32 v{T+13}, s{sT0}, v{T+13}")
        for r in range(4): a(f"v_mov_b32 v{T+14+r}, -1")
        for i in range(4): a(f"global_store_dwordx4 v{T+13}, {v(T+14,4)}, {sp(pWS)} offset:{i*1024} sc1")
        self.pq_addr(T+18, T+19)
        a(f"s_add_u32 s{pR}, s{pWS}, {R_Q0}\ns_addc_u32 s{pR+1}, s{pWS+1}, 0")
        a(f"s_mov_b32 s{mEVEN}, 0x55555555\ns_mov_b32 s{mEVEN+1}, 0x55555555\ns_mov_b64 exec, {sp(mEVEN)}")
        a(f"global_store_dword v{vPQ}, v{T+14}, {sp(pR)} sc1")
        a("s_mov_b64 exec, -1")
        a(f"{l}:")
        if c.code_prefetch:
            l = self.only_wave(2)
            a(f"s_getpc_b64 {sp(pR)}")
            a("L_pc:")
            a(f"s_sub_u32 s{pR}, s{pR}, L_pc-{NAME}\ns_subb_u32 s{pR+1}, s{pR+1}, 0")
            a(f"s_lshr_b32 s{sT0}, s2, 3\ns_lshl_b32 s{sT0}, s{sT0}, 11\nv_lshlrev_b32 v{T+13}, 4, v{vL}\nv_add_u32 v{T+13}, s{sT0}, v{T+13}")
            a(f"s_mov_b32 s{sT1}, L_text_end-{NAME}-1024-16")
            a(f"v_min_u32 v{T+13}, s{sT1}, v{T+13}")
            a(f"global_load_dwordx4 {v(T+14,4)}, v{T+13}, {sp(pR)}\nglobal_load_dwordx4 {v(T+18,4)}, v{T+13}, {sp(pR)} offset:1024")
            a(f"{l}:")
        self.patterns()
        a(f"s_lshl_b32 s{sLW}, s{sW}, 14")
        self.tile_setup("wq", 0); self.tile_setup("K", 1)
        first = []
        for k in range(8): first += [("wq", 2*k), ("wq", 2*k+1), ("K", k)]
        self.seq(first[:9])
        l = self.only_wave(3)
        a(f"s_getreg_b32 s{sGA}, hwreg(HW_REG_XCC_ID, 0, 4)")
        a(f"s_mul_i32 s{sGA+1}, s{sGA}, s{sGA}\ns_lshl_b32 s{sGA+1}, s{sGA+1}, 16\ns_or_b32 s{sGA+1}, s{sGA+1}, s{sGA}")
        a(f"s_and_b32 s{sT0}, s{sG}, 3\ns_lshl_b32 s{sT0}, s{sT0}, 4\ns_lshr_b32 s{sT1}, s{sG}, 2\ns_lshl_b32 s{sT1}, s{sT1}, 7\ns_add_u32 s{sT0}, s{sT0}, s{sT1}")
        a(f"v_mov_b32 v{T+17}, s{sT0}\nv_mov_b32 v{T+18}, 1\nv_mov_b32 v{T+19}, s{sGA+1}")
        a("s_waitcnt vmcnt(9)\ns_mov_b64 exec, 1")
        a(f"global_atomic_add_x2 v{T+17}, {v(T+18,2)}, {sp(pDBG)} sc1")
        a("s_mov_b64 exec, -1")
        a(f"v_lshlrev_b32 v{vRES}, 16, v{vRES}")
        a(f"{l}:")
        self.seq(first[9:])
        self.seq([("K", k) for k in range(8, 16)])
        self.patterns2()
        self.setup()
        a("s_waitcnt vmcnt(32)")
        self.early_ln()

    def pq_addr(self, t0, t1):
        a = self.a
        a(f"s_and_b32 s{sT1}, s{sS}, 1\ns_lshl_b32 s{sT1}, s{sT1}, 6\nv_add_u32 v{t0}, s{sT1}, v{vL}")
        a(f"v_lshrrev_b32 v{t1}, 5, v{t0}\nv_lshlrev_b32 v{t1}, 8, v{t1}")
        a(f"v_bfe_u32 v{vPQ}, v{t0}, 3, 2\nv_lshl_add_u32 v{t1}, v{vPQ}, 6, v{t1}")
        a(f"v_and_b32 v{t0}, 7, v{t0}\nv_lshl_add_u32 v{t1}, v{t0}, 1, v{t1}")
        a(f"s_lshl_b32 s{sT0}, s{sGRP}, 10\ns_lshr_b32 s{sT1}, s{sS}, 1\ns_lshl_b32 s{sT1}, s{sT1}, 4\ns_add_u32 s{sT0}, s{sT0}, s{sT1}\nv_add_u32 v{vPQ}, s{sT0}, v{t1}")

    def vm(self, tag):
        self.vq.append(tag)
    def wait_tile(self, tag):
        last = max(i for i, t in enumerate(self.vq) if t == tag)
        n = len(self.vq) - 1 - last
        assert n <= 63
        self.a(f"s_waitcnt vmcnt({n})")
    def patterns(self):
        a = self.a
        a(f"v_lshrrev_b32 v{T}, 3, v{vL}\nv_and_b32 v{T+1}, 7, v{vL}\nv_bfe_u32 v{T+2}, v{vL}, 4, 1\nv_lshlrev_b32 v{T+2}, 1, v{T+2}\nv_xor_b32 v{T+1}, v{T+1}, v{T+2}")
        a(f"v_lshlrev_b32 v{T+1}, 4, v{T+1}\nv_lshl_add_u32 v{vWQe}, v{T}, 13, v{T+1}\nv_xor_b32 v{vWQo}, 64, v{vWQe}")
        a(f"v_lshrrev_b32 v{T+5}, 4, v{vL}\nv_and_b32 v{T+6}, 15, v{vL}\nv_xor_b32 v{T+7}, v{T+6}, v{T+5}\nv_lshlrev_b32 v{T+7}, 4, v{T+7}")
        a(f"v_lshl_add_u32 v{vK0}, v{T+5}, 8, v{T+7}")
        a(f"v_xor_b32 v{vK0+1}, 64, v{vK0}\nv_xor_b32 v{vK0+2}, 128, v{vK0}\nv_xor_b32 v{vK0+3}, 192, v{vK0}")
    def patterns2(self):
        a = self.a
        a(f"v_lshrrev_b32 v{T}, 3, v{vL}\nv_and_b32 v{T+1}, 7, v{vL}\nv_bfe_u32 v{T+2}, v{vL}, 4, 1\nv_lshlrev_b32 v{T+2}, 1, v{T+2}\nv_xor_b32 v{T+1}, v{T+1}, v{T+2}")
        a(f"v_lshlrev_b32 v{T+1}, 4, v{T+1}\nv_lshl_add_u32 v{vWOe}, v{T}, 10, v{T+1}\nv_xor_b32 v{vWOo}, 64, v{vWOe}")
        a(f"v_lshrrev_b32 v{T+5}, 4, v{vL}\nv_and_b32 v{T+6}, 15, v{vL}\nv_lshlrev_b32 v{T+7}, 1, v{T+5}\nv_xor_b32 v{T+7}, v{T+6}, v{T+7}")
        a(f"v_lshlrev_b32 v{T+7}, 4, v{T+7}\nv_lshl_add_u32 v{vVe}, v{T+5}, 8, v{T+7}\nv_xor_b32 v{vVo}, 128, v{vVe}")
    def tile_setup(self, tile, slot):
        a = self.a
        srd, base = (SRD, sT2) if slot == 0 else (SRD2, sCNT)
        ptr, nb = {"wq": (pWQ, 4194304), "K": (pK, 67108864), "V": (pV, 67108864), "wo": (pWO, 4194304), "D": (pDOWN, 1835008)}[tile]
        a(f"s_mov_b32 s{srd}, s{ptr}\ns_and_b32 s{srd+1}, s{ptr+1}, 0xffff\ns_mov_b32 s{srd+2}, {nb}\ns_mov_b32 s{srd+3}, 0x20000")
        if tile == "wq":
            a(f"s_lshl_b32 s{base}, s{sG}, 10\ns_lshl_b32 s{sT0}, s{sS}, 7\ns_add_u32 s{base}, s{base}, s{sT0}\ns_lshl_b32 s{sT0}, s{sW}, 20\ns_add_u32 s{base}, s{base}, s{sT0}")
        elif tile in ("K", "V"):
            a(f"s_lshl_b32 s{base}, s{sB}, 24\ns_lshl_b32 s{sT0}, s{sG}, 21\ns_add_u32 s{base}, s{base}, s{sT0}")
            a(f"s_lshl_b32 s{sT0}, s{sS}, 16\ns_add_u32 s{base}, s{base}, s{sT0}\ns_add_u32 s{base}, s{base}, {6144*256}\ns_add_u32 s{base}, s{base}, s{sLW}")
        elif tile == "wo":
            a(f"s_lshl_b32 s{base}, s{sG}, 19\ns_lshl_b32 s{sT0}, s{sS}, 7\ns_add_u32 s{base}, s{base}, s{sT0}\ns_lshl_b32 s{sT0}, s{sW}, 17\ns_add_u32 s{base}, s{base}, s{sT0}")
        elif tile == "D":
            a(f"s_mul_i32 s{base}, s{sS}, 224\ns_mul_i32 s{sT0}, s{sW}, 56\ns_add_u32 s{base}, s{base}, s{sT0}\ns_lshl_b32 s{base}, s{base}, 10\ns_lshl_b32 s{sT0}, s{sG}, 7\ns_add_u32 s{base}, s{base}, s{sT0}")
        self.slot[tile] = slot
    def dma(self, tile, k):
        a = self.a; c = self.c
        slot = self.slot[tile]
        srd, base = (SRD, sT2) if slot == 0 else (SRD2, sCNT)
        buf, step, vr, nt = {"wq": (BUF_A, 65536, [vWQe, vWQo][k & 1], c.w_nt), "K": (BUF_B, 1024, vK0 + (k & 3), c.kv_nt),
                             "V": (BUF_A, 1024, [vVe, vVo][k & 1], c.kv_nt), "wo": (BUF_B, 8192, [vWOe, vWOo][k & 1], c.w_nt),
                             "D": (BUF_B, 8192, [vWOe, vWOo][k & 1], c.w_nt)}[tile]
        a(f"s_add_u32 m0, s{sLW}, {buf + k*1024}\ns_add_u32 s{sOFF}, s{base}, {k*step}")
        a(f"buffer_load_dwordx4 v{vr}, s[{srd}:{srd+3}], s{sOFF} offen {'nt ' if nt else ''}lds")
        self.vm(tile + (str(k >> 3) if tile == "V" else ""))
    def seq(self, items):
        for t, k in items: self.dma(t, k)

    def kv_base(self):
        a = self.a
        a(f"s_lshl_b32 s{sT2}, s{sB}, 24\ns_lshl_b32 s{sT0}, s{sG}, 21\ns_add_u32 s{sT2}, s{sT2}, s{sT0}")
        a(f"s_lshl_b32 s{sT0}, s{sS}, 16\ns_add_u32 s{sT2}, s{sT2}, s{sT0}\ns_add_u32 s{sT2}, s{sT2}, {6144*256}")

    def setup(self):
        a = self.a
        def m(reg, val):
            a(f"s_mov_b32 s{reg}, 0x{val & 0xffffffff:08x}\ns_mov_b32 s{reg+1}, 0x{val >> 32:08x}")
        m(mD, 0x0001000300030003); m(mQ, 0x000F000F000F000F); m(mEVEN, 0x5555555555555555); m(mODD, 0xAAAAAAAAAAAAAAAA)
        m(mEV32, 0x0000000055555555); m(m0_32, 0x0000000100000001); m(mLOW4, 0xF)
        a(f"s_mov_b32 s{sC}, 0x3e0293ee")
        a(f"s_mul_i32 s{sFS}, s{sG}, 7\ns_add_u32 s{sFS}, s{sFS}, s{sS}")
        a(f"s_mov_b32 s{pIT}, s{pWS}\ns_mov_b32 s{pIT+1}, s{pWS+1}")
        n, j, p, tp, t0, t1 = T+22, T+23, T+24, T+25, T+26, T+27
        n, j, p, tp, t0, t1 = 64, 65, 66, 67, 68, 69
        a(f"v_and_b32 v{n}, 15, v{vL}\nv_lshrrev_b32 v{j}, 4, v{vL}\nv_bfe_u32 v{p}, v{vL}, 1, 3\nv_and_b32 v{tp}, 1, v{vL}")
        for r in range(4): a(f"v_mov_b32 v{vONE+r}, 0x3f803f80")
        a(f"v_lshl_add_u32 v{t0}, v{tp}, 2, v{j}\nv_lshlrev_b32 v{t0}, 4, v{t0}\nv_lshl_add_u32 v{t0}, v{p}, 10, v{t0}")
        a(f"s_lshl_b32 s{sT0}, s{sB}, 13\ns_lshl_b32 s{sT1}, s{sW}, 8\ns_add_u32 s{sT0}, s{sT0}, s{sT1}\nv_add_u32 v{vXY}, s{sT0}, v{t0}")
        a(f"s_lshl_b32 s{sT0}, s{sGRP}, 13\ns_add_u32 s{sT0}, s{sT0}, s{sT1}\nv_add_u32 v{vO}, s{sT0}, v{t0}")
        a(f"v_lshl_add_u32 v{t0}, v{j}, 1, v{n}\nv_and_b32 v{t0}, 7, v{t0}\nv_lshlrev_b32 v{t0}, 3, v{t0}")
        a(f"s_lshl_b32 s{sT0}, s{sGRP}, 8\ns_lshl_b32 s{sT1}, s{sW}, 6\ns_add_u32 s{sT0}, s{sT0}, s{sT1}\nv_add_u32 v{vOS}, s{sT0}, v{t0}")
        a(f"s_lshl_b32 s{sT1}, s{sS}, 3\ns_add_u32 s{sT0}, s{sT0}, s{sT1}\nv_mov_b32 v{vPOS}, s{sT0}")
        a(f"v_lshl_add_u32 v{t0}, v{n}, 2, v{j}\nv_lshlrev_b32 v{t0}, 4, v{t0}")
        a(f"s_mul_i32 s{sT0}, s{sS}, 28\ns_mul_i32 s{sT1}, s{sW}, 7\ns_add_u32 s{sT0}, s{sT0}, s{sT1}\ns_lshl_b32 s{sT0}, s{sT0}, 4")
        a(f"s_lshl_b32 s{sT1}, s{sB}, 12\ns_add_u32 s{sT0}, s{sT0}, s{sT1}\nv_add_u32 v{vH}, s{sT0}, v{t0}")
        a(f"v_lshlrev_b32 v{t0}, 4, v{n}\nv_lshl_add_u32 v{t0}, v{j}, 6, v{t0}\ns_lshl_b32 s{sT0}, s{sGRP}, 10\nv_add_u32 v{vQ}, s{sT0}, v{t0}")
        self.pq_addr(t0, t1)
        a(f"s_lshl_b32 s{sT0}, s{sGRP}, 13\ns_lshl_b32 s{sT1}, s{sS}, 10\ns_add_u32 s{sT0}, s{sT0}, s{sT1}\ns_lshl_b32 s{sT1}, s{sW}, 8\ns_add_u32 s{sT0}, s{sT0}, s{sT1}")
        a(f"v_lshlrev_b32 v{t0}, 2, v{vL}\nv_add_u32 v{vPO}, s{sT0}, v{t0}")
        a(f"s_lshl_b32 s{sT0}, s{sGRP}, 11\ns_lshl_b32 s{sT1}, s{sS}, 8\ns_add_u32 s{sT0}, s{sT0}, s{sT1}\nv_add_u32 v{vPZ}, s{sT0}, v{t0}")
        a(f"s_lshl_b32 s{sT0}, s{sW}, 8\ns_add_u32 s{sT0}, s{sT0}, {E}\nv_add_u32 v{vPW}, s{sT0}, v{t0}\nv_add_u32 v{vPR}, {E}, v{t0}")
        a(f"v_mov_b32 v{vES}, {E}")
        a(f"v_lshlrev_b32 v{t1}, 1, v{vL}")
        a(f"s_lshl_b32 s{sT0}, s{sB}, 13\ns_lshl_b32 s{sT1}, s{sG}, 10\ns_add_u32 s{sT0}, s{sT0}, s{sT1}\ns_lshl_b32 s{sT1}, s{sS}, 7\ns_add_u32 s{sT0}, s{sT0}, s{sT1}\nv_add_u32 v{vPX}, s{sT0}, v{t1}")
        a(f"s_lshl_b32 s{sT0}, s{sB}, 13\ns_lshl_b32 s{sT1}, s{sS}, 10\ns_add_u32 s{sT0}, s{sT0}, s{sT1}\ns_lshl_b32 s{sT1}, s{sG}, 7\ns_add_u32 s{sT0}, s{sT0}, s{sT1}\nv_add_u32 v{vPY}, s{sT0}, v{t1}")
        a(f"s_lshl_b32 s{sT0}, s{sB}, 12\ns_lshl_b32 s{sT1}, s{sFS}, 6\ns_add_u32 s{sT0}, s{sT0}, s{sT1}\nv_add_u32 v{vPH}, s{sT0}, v{t1}")
        a(f"s_lshl_b32 s{sT0}, s{sW}, 11\ns_add_u32 s{sT0}, s{sT0}, {OB}\nv_and_b32 v{t1}, 3, v{n}\nv_lshlrev_b32 v{t1}, 9, v{t1}\nv_lshl_add_u32 v{t1}, v{j}, 4, v{t1}\nv_add_u32 v{vOD}, s{sT0}, v{t1}")
        a(f"s_lshl_b32 s{sT0}, s{sW}, 9\ns_add_u32 s{sT0}, s{sT0}, {OB}\nv_lshlrev_b32 v{t1}, 3, v{vL}\nv_add_u32 v{vOC}, s{sT0}, v{t1}")
        a(f"s_lshl_b32 s{sT0}, s{sW}, 3\ns_add_u32 s{sT1}, s{sT0}, {SB}\nv_and_b32 v{t1}, 3, v{n}\nv_lshlrev_b32 v{t1}, 5, v{t1}\nv_add_u32 v{vSBW}, s{sT1}, v{t1}")
        a(f"s_add_u32 s{sT1}, s{sT0}, {STQ}\nv_lshrrev_b32 v{t1}, 5, v{vL}\nv_lshlrev_b32 v{t1}, 2, v{t1}\nv_add_u32 v{vSTW}, s{sT1}, v{t1}")
        a(f"s_lshl_b32 s{sT0}, s{sW}, 5\ns_add_u32 s{sT0}, s{sT0}, {SB}\nv_mov_b32 v{vSBR}, s{sT0}")
        a(f"s_lshl_b32 s{sT0}, s{sW}, 8\ns_add_u32 s{sT0}, s{sT0}, {PD}\nv_lshlrev_b32 v{t1}, 4, v{n}\nv_add_u32 v{vDW}, s{sT0}, v{t1}")
        a(f"v_lshl_add_u32 v{t1}, v{j}, 2, v{t1}\nv_add_u32 v{vDR}, {PD}, v{t1}")

    def early_ln(self):
        a = self.a
        X = 72; s1, s2, t = T, T+1, T+2
        a(f"v_mov_b32 v{s1}, 0\nv_mov_b32 v{s2}, 0")
        for r in range(4):
            a(f"v_dot2_f32_bf16 v{s2}, v{X+r}, v{X+r}, v{s2}\nv_dot2_f32_bf16 v{s1}, v{X+r}, v{vONE}, v{s1}")
        for k in (8, 4, 2, 1):
            a(f"v_add_f32_dpp v{s2}, v{s2}, v{s2} row_ror:{k} {DPP}\nv_add_f32_dpp v{s1}, v{s1}, v{s1} row_ror:{k} {DPP}")
        a(f"v_permlane32_swap_b32 v{s2}, v{s1}\nv_add_f32 v{s2}, v{s2}, v{s1}")
        a(f"v_mov_b32 v{t}, v{s2}\nv_permlane16_swap_b32 v{s2}, v{t}\nv_add_f32 v{s2}, v{s2}, v{t}")
        a(f"v_mov_b32 v{s1}, v{s2}\nv_permlane32_swap_b32 v{s2}, v{s1}")
        a(f"v_mul_f32 v{s1}, 0x3b000000, v{s1}\nv_mul_f32 v{s2}, 0x3b000000, v{s2}")
        a(f"v_fma_f32 v{s2}, -v{s1}, v{s1}, v{s2}\nv_max_f32 v{s2}, 0, v{s2}\nv_add_f32 v{s2}, 0x3727c5ac, v{s2}\nv_rsq_f32 v{s2}, v{s2}")
        a(f"s_mov_b64 exec, {sp(mA2)}")
        for r in range(8):
            a(f"v_lshlrev_b32 v{t}, 16, v{A0+r}\nv_and_b32 v{t+1}, 0xffff0000, v{A0+r}")
            a(f"v_sub_f32 v{t}, v{t}, v{s1}\nv_sub_f32 v{t+1}, v{t+1}, v{s1}\nv_mul_f32 v{t}, v{t}, v{s2}\nv_mul_f32 v{t+1}, v{t+1}, v{s2}")
            a(f"v_cvt_pk_bf16_f32 v{A0+r}, v{t}, v{t+1}")
        a("s_mov_b64 exec, -1")

    def colsum_q(self):
        a = self.a
        o0 = ACC2+32
        for r in range(4): a(f"v_mov_b32 v{o0+r}, 0")
        a(f"s_mov_b64 exec, {sp(mA2)}")
        for r in range(4): a(f"v_mov_b32 v{o0+r}, 0x3f803f80")
        a("s_mov_b64 exec, -1")
        self.gemv(Wq, PQC, A0r=o0, A1r=o0)

    def q_phase(self, it):
        a = self.a; c = self.c
        if it == 0:
            self.wait_tile("wq")
            self.stamp("wq landed")
            self.w_read_addrs(BUF_A, 14)
            self.w_reads(Wq, 4, range(4))
            a("s_waitcnt lgkmcnt(0)")
            self.gemv(Wq, PQ)
        else:
            self.region(R_YZ - IT_STRIDE)
            self.poll([f"global_load_dwordx4 {v(A0,4)}, v{vXY}, {sp(pR)} sc1", f"global_load_dwordx4 {v(A1,4)}, v{vXY}, {sp(pR)} offset:128 sc1"],
                      list(range(A0, A0+8)), delay=c.d_Y)
            self.stamp("Y got")
            self.gemv(Wq, PQ, stats=STQ)
        self.barrier()
        l = self.only_wave(3)
        if it == 0:
            self.final_sum(PQ, T+12); a("s_waitcnt lgkmcnt(0)"); self.final_sum2(T+12)
        else:
            self.final_sum(PQ, T+12)
            self.ln_fix(STQ, T+12, vCQ)
        self.pack_pairs(T+12, T+13)
        if it == 0:
            a(f"s_add_u32 s{pR}, s{pWS}, {R_Q0}\ns_addc_u32 s{pR+1}, s{pWS+1}, 0")
            a(f"s_mov_b64 exec, {sp(mEVEN)}")
            a(f"global_store_dword v{vPQ}, v{T+13}, {sp(pR)} sc1")
        else:
            self.region(R_Q)
            a(f"s_mov_b64 exec, {sp(mEVEN)}")
            self.store_local(f"global_store_dword v{vPQ}, v{T+13}, {sp(pR)}")
        a("s_mov_b64 exec, -1")
        self.stamp("Q pub")
        if it == 1:
            lg = a.lbl("Lrg"); a(f"s_cmp_lg_u32 s{sG}, 0\ns_cbranch_scc1 {lg}")
            a(f"s_lshl_b32 s{sT0}, s{sB}, 13\ns_lshl_b32 s{sT1}, s{sS}, 7\ns_add_u32 s{sT0}, s{sT0}, s{sT1}\nv_lshlrev_b32 v{T+20}, 1, v{vL}\nv_add_u32 v{T+20}, s{sT0}, v{T+20}")
            self.sum8_resid(R_YZ - IT_STRIDE, T+20)
            a(f"{lg}:")
        a(f"{l}:")
        if it == 0:
            self.tile_setup("V", 0)
            self.seq([("V", k) for k in range(8)])

    def scalar_flags(self):
        a = self.a; c = self.c
        lp = a.lbl("Lfl"); ld = a.lbl("Lfd")
        G = sGA
        def chk():
            a("s_waitcnt lgkmcnt(0)")
            a(f"s_min_u32 s{sT0}, s{G}, s{G+4}")
            for k in range(2, 8): a(f"s_min_u32 s{sT0}, s{sT0}, s{G+4*k}")
            a(f"s_cmp_ge_u32 s{sT0}, 32")
        a(f"s_load_dwordx16 s[{G}:{G+15}], {sp(pDBG)}, 0\ns_load_dwordx16 s[{G+16}:{G+31}], {sp(pDBG)}, 128")
        chk()
        a(f"s_cbranch_scc1 {ld}\ns_mov_b32 s{sSPIN}, 0")
        a(f"{lp}:")
        a("s_sleep 16")
        a(f"s_load_dwordx16 s[{G}:{G+15}], {sp(pDBG)}, 0 glc\ns_load_dwordx16 s[{G+16}:{G+31}], {sp(pDBG)}, 128 glc")
        chk()
        a(f"s_cbranch_scc1 {ld}\ns_add_u32 s{sSPIN}, s{sSPIN}, 1\ns_cmp_lt_u32 s{sSPIN}, {c.spin_limit//8}\ns_cbranch_scc1 {lp}")
        a(f"{ld}:")
        a(f"s_mov_b32 s{sT1}, s{G+1}\ns_mov_b32 s{sOFF}, s{G}")
        for k in range(1, 8): a(f"s_cmp_eq_u32 s{sG}, {k}\ns_cselect_b32 s{sT1}, s{G+4*k+1}, s{sT1}\ns_cselect_b32 s{sOFF}, s{G+4*k}, s{sOFF}")
        a(f"s_and_b32 s{sT0}, s{sT1}, 0xffff\ns_lshr_b32 s{sT1}, s{sT1}, 16")
        a(f"s_mul_i32 s{sT0}, s{sT0}, s{sT0}\ns_lshl_b32 s{sT1}, s{sT1}, 5\ns_cmp_eq_u32 s{sT0}, s{sT1}\ns_cselect_b32 s{sLOC}, 1, 0")
        a(f"s_cmp_eq_u32 s{sOFF}, 32\ns_cselect_b32 s{sLOC}, s{sLOC}, 0")

    def scalar_q_gather(self):
        a = self.a; c = self.c
        G = sGA
        a(f"s_lshl_b32 s{sT0}, s{sGRP}, 10\ns_lshl_b32 s{sT1}, s{sW}, 8\ns_add_u32 s{sT0}, s{sT0}, s{sT1}\ns_add_u32 s{sT0}, s{sT0}, {R_Q0}")
        a(f"s_add_u32 s{pR}, s{pWS}, s{sT0}\ns_addc_u32 s{pR+1}, s{pWS+1}, 0")
        def rounds(fl):
            for h in range(2):
                a(f"s_load_dwordx16 s[{G}:{G+15}], {sp(pR)}, {128*h}{fl}\ns_load_dwordx16 s[{G+16}:{G+31}], {sp(pR)}, {128*h+64}{fl}")
                a("s_waitcnt lgkmcnt(0)")
                for i in range(32): a(f"v_writelane_b32 v{T}, s{G+i}, {32*h+i}")
            a(f"v_cmp_eq_u32 vcc, -1, v{T}")
        lp = a.lbl("Lqg"); ld = a.lbl("Lqd")
        rounds("")
        a(f"s_cbranch_vccz {ld}\ns_mov_b32 s{sSPIN}, 0")
        a(f"{lp}:")
        rounds(" glc")
        a(f"s_cbranch_vccz {ld}\ns_add_u32 s{sSPIN}, s{sSPIN}, 1\ns_cmp_lt_u32 s{sSPIN}, {c.spin_limit//4}\ns_cbranch_scc1 {lp}")
        a(f"{ld}:")
        a(f"s_lshl_b32 s{sT0}, s{sW}, 8\ns_add_u32 s{sT0}, s{sT0}, {QB}\nv_lshlrev_b32 v{T+1}, 2, v{vL}\nv_add_u32 v{T+1}, s{sT0}, v{T+1}")
        a(f"ds_write_b32 v{T+1}, v{T}")

    def attention(self, it):
        a = self.a; c = self.c
        if it == 0:
            self.wait_tile("K")
            self.stamp("K landed")
            a(f"v_and_b32 v{T}, 15, v{vL}\nv_lshrrev_b32 v{T+1}, 4, v{vL}\nv_xor_b32 v{T+2}, v{T}, v{T+1}\nv_lshlrev_b32 v{T+2}, 4, v{T+2}\nv_lshl_add_u32 v{T+2}, v{T}, 8, v{T+2}")
            a(f"s_add_u32 s{sT0}, s{sLW}, {BUF_B}\nv_add_u32 v{T+2}, s{sT0}, v{T+2}")
            for i in range(4): a(f"v_xor_b32 v{T+4+i}, {64*i}, v{T+2}")
            for Tt in range(4):
                for i in range(4): a(f"ds_read_b128 {a_(aK+16*Tt+4*i,4)}, v{T+4+i} offset:{Tt*4096}")
            self.scalar_flags()
            self.scalar_q_gather()
            self.barrier()
            self.stamp("q in LDS")
            a(f"v_and_b32 v{T}, 3, v{vL}\nv_lshrrev_b32 v{T+1}, 4, v{vL}\nv_lshl_add_u32 v{T}, v{T+1}, 2, v{T}\nv_lshlrev_b32 v{T}, 4, v{T}\nv_add_u32 v{T}, {QB}, v{T}")
            for i in range(4): a(f"ds_read_b128 {v(QF+4*i,4)}, v{T} offset:{256*i}")
            a("s_waitcnt lgkmcnt(0)")
        else:
            self.region(R_Q)
            self.poll([f"global_load_dwordx4 {v(QF+4*i,4)}, v{vQ}, {sp(pR)} offset:{256*i} sc1" for i in range(4)],
                      list(range(QF, QF+16)), mask=mQ, delay=c.d_Q)
            self.stamp("Q got")
        for Tt in range(4):
            for i in range(4):
                a(f"{MF} {v(SA+4*Tt,4)}, {a_(aK+16*Tt+4*i,4)}, {v(QF+4*i,4)}, {'0' if i==0 else v(SA+4*Tt,4)}")
        mx, t = T, T+1
        a(f"v_max3_f32 v{mx}, v{SA}, v{SA+1}, v{SA+2}")
        r = SA+3
        while r < SA+16:
            if r+1 < SA+16: a(f"v_max3_f32 v{mx}, v{mx}, v{r}, v{r+1}"); r += 2
            else: a(f"v_max_f32 v{mx}, v{mx}, v{r}"); r += 1
        a(f"v_mov_b32 v{t}, v{mx}\nv_permlane32_swap_b32 v{mx}, v{t}\nv_max_f32 v{mx}, v{mx}, v{t}")
        a(f"v_mov_b32 v{t}, v{mx}\nv_permlane16_swap_b32 v{mx}, v{t}\nv_max_f32 v{mx}, v{mx}, v{t}")
        mc = T+20
        a(f"v_mul_f32 v{mc}, s{sC}, v{mx}")
        def pexp(u):
            for Tt in (2*u, 2*u+1):
                for r in range(4): a(f"v_fma_f32 v{SA+4*Tt+r}, v{SA+4*Tt+r}, s{sC}, -v{mc}")
                for r in range(4): a(f"v_exp_f32 v{SA+4*Tt+r}, v{SA+4*Tt+r}")
                h = (Tt & 1)*2
                a(f"v_cvt_pk_bf16_f32 v{PP+4*u+h}, v{SA+4*Tt}, v{SA+4*Tt+1}\nv_cvt_pk_bf16_f32 v{PP+4*u+h+1}, v{SA+4*Tt+2}, v{SA+4*Tt+3}")
        pexp(0); pexp(1)
        def vread(u):
            b = T+4
            a(f"v_lshrrev_b32 v{b}, 4, v{vL}\nv_bfe_u32 v{b+1}, v{vL}, 2, 2\nv_lshl_add_u32 v{b}, v{b}, 2, v{b+1}")
            a(f"v_and_b32 v{b+1}, 7, v{b}\nv_lshlrev_b32 v{b+1}, 1, v{b+1}\nv_bfe_u32 v{b+2}, v{vL}, 1, 1\nv_xor_b32 v{b+1}, v{b+1}, v{b+2}")
            a(f"v_lshlrev_b32 v{b+1}, 4, v{b+1}\nv_lshl_add_u32 v{b}, v{b}, 8, v{b+1}\nv_and_b32 v{b+1}, 1, v{vL}\nv_lshl_add_u32 v{b}, v{b+1}, 3, v{b}")
            a(f"s_add_u32 s{sT0}, s{sLW}, {BUF_A}\nv_add_u32 v{b}, s{sT0}, v{b}")
            for ct in range(8): a(f"v_xor_b32 v{b+1+ct}, {32*ct}, v{b}")
            for ct in range(8):
                for h in range(2):
                    d = aV+32*u+4*ct+2*h
                    a(f"ds_read_b64_tr_b16 a[{d}:{d+1}], v{b+1+ct} offset:{u*8192+h*4096}")
            a("s_waitcnt lgkmcnt(0)")
        for u in range(2):
            if it == 0:
                if u == 0:
                    self.stamp("softmax")
                    self.tile_setup("wo", 1)
                    self.seq([("V", 8), ("wo", 0), ("V", 9), ("wo", 1), ("V", 10), ("wo", 2), ("V", 11), ("wo", 3)])
                else:
                    self.seq([("V", 12), ("wo", 4), ("V", 13), ("wo", 5), ("V", 14), ("wo", 6), ("V", 15), ("wo", 7)])
                    self.seq([("wo", k) for k in range(8, 16)])
                self.wait_tile(f"V{u}")
                self.stamp(f"V{u} landed")
                vread(u)
            for ct in range(8):
                a(f"{MF} {v(OA+4*ct,4)}, {a_(aV+32*u+4*ct,4)}, {v(PP+4*u,4)}, {'0' if u==0 else v(OA+4*ct,4)}")
            a(f"{MF} {v(LA,4)}, {v(vONE,4)}, {v(PP+4*u,4)}, {'0' if u==0 else v(LA,4)}")
        a(f"s_mov_b64 exec, {sp(mQ)}")
        for ct in range(8): a(f"ds_write_b128 v{vOD}, {v(OA+4*ct,4)} offset:{64*ct}")
        a(f"s_mov_b64 exec, {sp(mLOW4)}")
        a(f"v_mov_b32 v{mc+1}, v{LA}")
        a(f"ds_write_b64 v{vSBW}, {v(mc,2)}")
        a("s_mov_b64 exec, -1")
        self.barrier()
        a(f"ds_read_b128 {v(T+4,4)}, v{vSBR}\nds_read_b128 {v(T+8,4)}, v{vSBR} offset:16")
        for ws in range(4): a(f"ds_read_b64 {v(T+12+2*ws,2)}, v{vOC} offset:{2048*ws}")
        a("s_waitcnt lgkmcnt(4)")
        M = T
        a(f"v_max3_f32 v{M}, v{T+4}, v{T+6}, v{T+8}\nv_max_f32 v{M}, v{M}, v{T+10}")
        for i in range(4): a(f"v_sub_f32 v{T+4+2*i}, v{T+4+2*i}, v{M}")
        for i in range(4): a(f"v_exp_f32 v{T+4+2*i}, v{T+4+2*i}")
        a(f"v_mul_f32 v{M+1}, v{T+4}, v{T+5}")
        for i in range(1,4): a(f"v_fmac_f32 v{M+1}, v{T+4+2*i}, v{T+5+2*i}")
        a("s_waitcnt lgkmcnt(0)")
        a(f"v_mul_f32 v{T+2}, v{T+4}, v{T+12}\nv_mul_f32 v{T+3}, v{T+4}, v{T+13}")
        for i in range(1,4): a(f"v_fmac_f32 v{T+2}, v{T+4+2*i}, v{T+12+2*i}\nv_fmac_f32 v{T+3}, v{T+4+2*i}, v{T+13+2*i}")
        a(f"v_cvt_pk_bf16_f32 v{T+2}, v{T+2}, v{T+3}")
        self.region(R_O)
        self.store_local(f"global_store_dword v{vPO}, v{T+2}, {sp(pR)}")
        self.region(R_OS)
        a("s_mov_b64 exec, 1")
        self.store_local(f"global_store_dwordx2 v{vPOS}, {v(M,2)}, {sp(pR)}")
        a("s_mov_b64 exec, -1")
        self.stamp("O pub")

    def o_phase(self, it):
        a = self.a; c = self.c
        self.region(R_O)
        a(f"s_add_u32 s{sT3}, s{pIT}, {R_OS}\ns_addc_u32 s{sT3+1}, s{pIT+1}, 0")
        self.poll([f"global_load_dwordx4 {v(A0,4)}, v{vO}, {sp(pR)} sc1", f"global_load_dwordx4 {v(A1,4)}, v{vO}, {sp(pR)} offset:128 sc1",
                   f"global_load_dwordx2 {v(vOSD,2)}, v{vOS}, {sp(sT3)} sc1"], list(range(A0, A0+10)), delay=c.d_O)
        self.stamp("O got")
        if it == 0:
            self.w_read_addrs(BUF_B, 14)
            self.w_reads(Wo, 4, range(4))
            a("s_waitcnt lgkmcnt(0)")
        mm, al, dn = T+16, T+17, T+18
        wA, wB = T+19, T+20
        pre = [f"v_max_f32_dpp v{mm}, v{vOSD}, v{vOSD} row_ror:4 {DPP}",
               f"v_max_f32_dpp v{mm}, v{mm}, v{mm} row_ror:2 {DPP}",
               f"v_max_f32_dpp v{mm}, v{mm}, v{mm} row_ror:1 {DPP}",
               f"v_sub_f32 v{al}, v{vOSD}, v{mm}",
               f"v_exp_f32 v{al}, v{al}",
               f"v_mul_f32 v{dn}, v{al}, v{vOSD+1}",
               f"v_add_f32_dpp v{dn}, v{dn}, v{dn} row_ror:4 {DPP}",
               f"v_add_f32_dpp v{dn}, v{dn}, v{dn} row_ror:2 {DPP}",
               f"v_add_f32_dpp v{dn}, v{dn}, v{dn} row_ror:1 {DPP}",
               f"v_rcp_f32 v{dn}, v{dn}",
               f"v_mul_f32 v{al}, v{al}, v{dn}",
               f"v_mov_b32_dpp v{wA}, v{al} row_newbcast:0 {DPP}",
               f"v_mov_b32_dpp v{wB}, v{al} row_newbcast:1 {DPP}"]
        self.gemv(Wo, PO, weighted=(wA, wB), pre_ops=pre)
        self.barrier()
        if it == 0:
            l = a.lbl("Lg3"); a(f"s_cmp_eq_u32 s{sW}, 3\ns_cbranch_scc1 {l}")
            l7 = a.lbl("Ls7"); a(f"s_cmp_eq_u32 s{sS}, 7\ns_cbranch_scc1 {l7}")
            self.g_dma()
            a(f"{l7}:"); a(f"{l}:")
        l = self.only_wave(3)
        self.final_sum(PO, T+12); a("s_waitcnt lgkmcnt(0)"); self.final_sum2(T+12)
        lg = a.lbl("Lrg"); a(f"s_cmp_lg_u32 s{sG}, 0\ns_cbranch_scc1 {lg}\nv_add_f32 v{T+12}, v{T+12}, v{vRES}"); a(f"{lg}:")
        self.pack_pairs(T+12, T+13)
        self.region(R_X)
        a(f"s_mov_b64 exec, {sp(mEVEN)}")
        a(f"global_store_dword v{vPX}, v{T+13}, {sp(pR)} sc1")
        a("s_mov_b64 exec, -1")
        self.stamp("X pub")
        if it == 0:
            l7 = a.lbl("Ls7"); a(f"s_cmp_eq_u32 s{sS}, 7\ns_cbranch_scc1 {l7}")
            self.g_dma()
            a(f"{l7}:")
        a(f"{l}:")

    def g_dma(self):
        a = self.a; c = self.c
        a(f"v_lshrrev_b32 v{T}, 3, v{vL}\nv_and_b32 v{T+1}, 7, v{vL}\nv_bfe_u32 v{T+2}, v{vL}, 4, 1\nv_lshlrev_b32 v{T+2}, 1, v{T+2}\nv_xor_b32 v{T+1}, v{T+1}, v{T+2}")
        a(f"v_cmp_gt_u32 vcc, 4, v{T+1}")
        a(f"v_and_b32 v{T+1}, 3, v{T+1}\nv_lshlrev_b32 v{T+1}, 4, v{T+1}\nv_mul_u32_u24 v{T}, 3584, v{T}\nv_add_u32 v{T}, v{T}, v{T+1}")
        a(f"s_lshl_b32 s{sT0}, s{sFS}, 6\ns_mul_i32 s{sT1}, s{sW}, {128*3584}\ns_add_u32 s{sT0}, s{sT0}, s{sT1}\nv_add_u32 v{T}, s{sT0}, v{T}")
        a(f"v_mov_b32 v{T+2}, s{pUP}\nv_mov_b32 v{T+3}, s{pUP+1}\nv_mov_b32 v{T+4}, s{pGATE}\nv_mov_b32 v{T+5}, s{pGATE+1}")
        a(f"v_cndmask_b32 v{vGE}, v{T+2}, v{T+4}, vcc\nv_cndmask_b32 v{vGE+1}, v{T+3}, v{T+5}, vcc")
        a(f"v_cndmask_b32 v{vGO}, v{T+4}, v{T+2}, vcc\nv_cndmask_b32 v{vGO+1}, v{T+5}, v{T+3}, vcc")
        a(f"v_add_co_u32 v{vGE}, vcc, v{vGE}, v{T}\nv_addc_co_u32 v{vGE+1}, vcc, 0, v{vGE+1}, vcc")
        a(f"v_add_u32 v{T}, {8*3584}, v{T}")
        a(f"v_add_co_u32 v{vGO}, vcc, v{vGO}, v{T}\nv_addc_co_u32 v{vGO+1}, vcc, 0, v{vGO+1}, vcc")
        a(f"s_add_u32 m0, s{sLW}, {BUF_A}")
        fl = " nt" if c.w_nt else ""
        l = a.lbl("Lgd")
        a(f"s_mov_b32 s{sCNT}, 8\ns_mov_b32 s{sT1}, {16*3584}")
        a(f"{l}:")
        for r in (vGE, vGO):
            a(f"global_load_lds_dwordx4 {v(r,2)}, off{fl}")
            a(f"s_add_u32 m0, m0, 1024")
            a(f"v_add_co_u32 v{r}, vcc, s{sT1}, v{r}\nv_addc_co_u32 v{r+1}, vcc, 0, v{r+1}, vcc")
        a(f"s_sub_u32 s{sCNT}, s{sCNT}, 1\ns_cmp_lg_u32 s{sCNT}, 0\ns_cbranch_scc1 {l}")

    def d_dma(self):
        self.tile_setup("D", 0)
        self.seq([("D", k) for k in range(8)])

    def g_phase(self, it):
        a = self.a; c = self.c
        l7 = a.lbl("Lg7")
        a(f"s_cmp_eq_u32 s{sS}, 7\ns_cbranch_scc1 {l7}")
        self.region(R_X)
        self.poll([f"global_load_dwordx4 {v(A0,4)}, v{vXY}, {sp(pR)} sc1", f"global_load_dwordx4 {v(A1,4)}, v{vXY}, {sp(pR)} offset:128 sc1"],
                  list(range(A0, A0+8)), delay=c.d_X)
        self.stamp("X got")
        if it == 0:
            self.d_dma()
            self.w_read_addrs(BUF_A, 14)
            self.w_reads(Wg, 4, range(4))
            a("s_waitcnt lgkmcnt(0)")
            o0 = ACC2+32
            for r in range(4): a(f"v_mov_b32 v{o0+r}, 0")
            a(f"s_mov_b64 exec, {sp(mA2)}")
            for r in range(4): a(f"v_mov_b32 v{o0+r}, 0x3f803f80")
            a("s_mov_b64 exec, -1")
            self.gemv(Wg, PGC, A0r=o0, A1r=o0)
        self.gemv(Wg, PG, stats=STG)
        self.barrier()
        l = self.only_wave(3)
        if it == 0:
            self.final_sum(PGC, vCG); a("s_waitcnt lgkmcnt(0)"); self.final_sum2(vCG)
        self.final_sum(PG, T+12)
        self.ln_fix(STG, T+12, vCG)
        z, u_ = T+12, T+13
        a(f"v_mov_b32 v{u_}, v{z}\nv_permlane32_swap_b32 v{z}, v{u_}")
        a(f"v_mul_f32 v{z}, 0xbfb8aa3b, v{z}\nv_exp_f32 v{z}, v{z}\nv_add_f32 v{z}, 1.0, v{z}\nv_rcp_f32 v{z}, v{z}\nv_mul_f32 v{z}, v{z}, v{u_}")
        self.pack_pairs(z, T+14)
        self.region(R_H)
        a(f"s_mov_b64 exec, {sp(mEV32)}")
        a(f"global_store_dword v{vPH}, v{T+14}, {sp(pR)} sc1")
        a("s_mov_b64 exec, -1")
        self.stamp("H pub")
        lg = a.lbl("Lrs"); a(f"s_cmp_lg_u32 s{sS}, 0\ns_cbranch_scc1 {lg}")
        a(f"s_lshl_b32 s{sT0}, s{sB}, 13\ns_lshl_b32 s{sT1}, s{sG}, 7\ns_add_u32 s{sT0}, s{sT0}, s{sT1}\nv_lshlrev_b32 v{T+20}, 1, v{vL}\nv_add_u32 v{T+20}, s{sT0}, v{T+20}")
        self.sum8_resid(R_X, T+20)
        a(f"{lg}:")
        a(f"{l}:")
        if it == 0:
            lskip = a.lbl("Lgs"); a(f"s_branch {lskip}")
            a(f"{l7}:")
            self.d_dma()
            a(f"{lskip}:")
        else:
            a(f"{l7}:")

    def d_phase(self, it):
        a = self.a; c = self.c
        if it == 0: self.colsum_q()
        for r in range(4): a(f"v_mov_b32 v{A0+r}, 0")
        self.region(R_H)
        self.poll([f"global_load_dwordx4 {v(A0,4)}, v{vH}, {sp(pR)} sc1"], list(range(A0, A0+4)), mask=mD, delay=c.d_H)
        self.stamp("H got")
        if it == 0:
            self.w_read_addrs(BUF_B, 14)
            self.w_reads(Wd, 2, range(4))
            a("s_waitcnt lgkmcnt(0)")
        for ct in range(4):
            for ts in range(2):
                a(f"{MF} {v(ACC+(ct*2+ts)*4,4)}, {v(A0,4)}, {Wd(ts,ct)}, 0")
        val = T+12
        for ct in range(4): a(f"v_add_f32 v{val+ct}, v{ACC+ct*8}, v{ACC+ct*8+5}")
        a(f"s_mov_b32 s{sT3}, 0xffff\ns_mov_b32 s{sT3+1}, 0\ns_mov_b64 exec, {sp(sT3)}")
        a(f"ds_write_b128 v{vDW}, {v(val,4)}")
        a("s_mov_b64 exec, -1")
        self.barrier()
        l = self.only_wave(3)
        a(f"ds_read2st64_b32 {v(T,2)}, v{vDR} offset0:0 offset1:1\nds_read2st64_b32 {v(T+2,2)}, v{vDR} offset0:2 offset1:3\ns_waitcnt lgkmcnt(0)")
        self.final_sum2(T+12)
        lg = a.lbl("Lrs"); a(f"s_cmp_lg_u32 s{sS}, 0\ns_cbranch_scc1 {lg}\nv_add_f32 v{T+12}, v{T+12}, v{vRES}"); a(f"{lg}:")
        self.region(R_YZ)
        if it == 0:
            self.pack_pairs(T+12, T+13)
            a(f"s_mov_b64 exec, {sp(mEVEN)}")
            a(f"global_store_dword v{vPY}, v{T+13}, {sp(pR)} sc1")
            a("s_mov_b64 exec, -1")
            self.stamp("Y pub")
            self.final_sum(PQC, vCQ); a("s_waitcnt lgkmcnt(0)"); self.final_sum2(vCQ)
        else:
            self.store_local(f"global_store_dword v{vPZ}, v{T+12}, {sp(pR)}")
            self.stamp("Z pub")
            lz = a.lbl("Lz"); a(f"s_cmp_lg_u32 s{sS}, 0\ns_cbranch_scc1 {lz}")
            a(f"s_lshl_b32 s{sT0}, s{sGRP}, 11\nv_lshlrev_b32 v{T+20}, 2, v{vL}\nv_add_u32 v{T+20}, s{sT0}, v{T+20}")
            self.poll([f"global_load_dword v{64+p}, v{T+20}, {sp(pR)} offset:{256*p} sc1" for p in range(8)], list(range(64, 72)), delay=c.d_Z)
            a("v_add_f32 v64, v64, v65\nv_add_f32 v66, v66, v67\nv_add_f32 v68, v68, v69\nv_add_f32 v70, v70, v71\nv_add_f32 v64, v64, v66\nv_add_f32 v68, v68, v70")
            a(f"v_add_f32 v{T+12}, v64, v68")
            self.pack_pairs(T+12, T+13)
            a(f"s_lshl_b32 s{sT0}, s{sB}, 10\ns_lshl_b32 s{sT1}, s{sG}, 7\ns_add_u32 s{sT0}, s{sT0}, s{sT1}\nv_lshlrev_b32 v{T+14}, 1, v{vL}\nv_add_u32 v{T+14}, s{sT0}, v{T+14}")
            a(f"s_mov_b64 exec, {sp(mEVEN)}")
            a(f"global_store_dword v{T+14}, v{T+13}, {sp(pOUT)}")
            a("s_mov_b64 exec, -1")
            self.stamp("out")
            a(f"{lz}:")
        a(f"{l}:")

    def build(self):
        a = self.a
        self.prologue()
        self.stamp("entry", reg=94)
        self.stamp("start")
        for it in range(2):
            if it == 1:
                a(f"s_add_u32 s{pIT}, s{pIT}, {IT_STRIDE}\ns_addc_u32 s{pIT+1}, s{pIT+1}, 0")
            self.q_phase(it)
            self.attention(it)
            self.o_phase(it)
            self.g_phase(it)
            self.d_phase(it)
        self.stamp_flush()
        if self.c.dbgtime:
            l = self.only_wave(3)
            a("s_waitcnt vmcnt(0)\ns_memrealtime s[100:101]\ns_waitcnt lgkmcnt(0)\ns_mov_b64 exec, 1")
            a(f"v_mov_b32 v60, 8\nv_not_b32 v61, v157\nglobal_atomic_umax v60, v61, {sp(pDBG)} sc1")
            a(f"v_mov_b32 v62, 12\nv_mov_b32 v63, s100\nglobal_atomic_umax v62, v63, {sp(pDBG)} sc1")
            a(f"{l}:")
        a("L_end:")
        a("s_endpgm")
        a("L_text_end:")
        hdr = ["; Persistent single-launch decode kernel: 256 workgroups (one per CU), 4 waves each.",
               "; Generated by gen/genk.py (hand-designed schedule).",
               f"; @launch grid=(256,1,1) block=(256,1,1) lds={LDS_SIZE}"]
        return kernel_file(NAME, a.text(), hdr, vgpr=512, sgpr=102, accum=256)

if __name__ == "__main__":
    import argparse
    ap = argparse.ArgumentParser()
    ap.add_argument("-o", default="interleave_layers__sliding_block_cached__glu_gated_glu__decode.s")
    ap.add_argument("--stamps", action="store_true")
    ap.add_argument("--set", action="append", default=[])
    args = ap.parse_args()
    c = Cfg(); c.stamps = args.stamps
    for kv in args.set:
        k, val = kv.split("="); setattr(c, k, int(val))
    g = Gen(c)
    txt = g.build()
    open(args.o, "w").write(txt)
    print("instructions:", g.a.count, "nops inserted:", g.a.nops, "stamps:", g.stamp_names)
```
